```python
import torch

def _softmax(x, axis=-1):
    return torch.softmax(x, dim=axis)
def _gelu(x):
    return torch.nn.functional.gelu(x, approximate="tanh")
def _silu(x):
    return torch.nn.functional.silu(x)
def _sigmoid(x):
    return torch.sigmoid(x)
def _layernorm(x, axis=-1, eps=1e-5):
    m = x.mean(dim=axis, keepdim=True)
    v = x.var(dim=axis, keepdim=True, unbiased=False)
    return (x - m) / torch.sqrt(v + eps)
def _scatter_add(tgt, idx, src, axis=0):
    return tgt.clone().index_add_(axis, idx, src)
def _segment_sum(src, seg, n):
    out = torch.zeros((n,) + src.shape[1:], dtype=src.dtype)
    return out.index_add_(0, seg, src)
def _pad(x, pw):
    flat = tuple(v for pair in reversed(pw) for v in pair)
    return torch.nn.functional.pad(x, flat)

kernel_name = 'concat_heads__sliding_block_cached__mha_block_cached__decode'

def setup_inputs():

    _w = (lambda a: (lambda t: t.to(torch.bfloat16) if t.is_floating_point() else t)(torch.as_tensor(a)))
    def _A_setup():
        B, Sq, D = 2, 1, 576
        Hq, Hkv, Sk, Dh = 32, 16, 8192, 128
        assert Hq % Hkv == 0, (Hq, Hkv)
        return {
            "x": _w((lambda *s: torch.randn(*s, dtype=torch.bfloat16) * 0.8)(B, Sq, D)),
            "k_cache": _w((lambda *s: torch.randn(*s, dtype=torch.bfloat16) * 1.6)(B, Hkv, Sk, Dh)),
            "v_cache": _w((lambda *s: torch.randn(*s, dtype=torch.bfloat16) * 0.2)(B, Hkv, Sk, Dh)),
            "wq": _w((lambda *s: torch.randn(*s, dtype=torch.bfloat16) * 1.6)(D, Hq * Dh) * (D ** -0.5)),
            "wo": _w((lambda *s: torch.randn(*s, dtype=torch.bfloat16) * 0.2)(Hq * Dh, D) * ((Hq * Dh) ** -0.5)),
        }
    _A_in = _A_setup()

    def _B_setup():
        B, Sq, D = 2, 1, 576
        H, Sk, Dh = 32, 8192, 128
        return {
            "x": _w((lambda *s: torch.randn(*s, dtype=torch.bfloat16) * 0.8)(B, Sq, D)),
            "k_cache": _w((lambda *s: torch.randn(*s, dtype=torch.bfloat16) * 1.6)(B, H, Sk, Dh)),
            "v_cache": _w((lambda *s: torch.randn(*s, dtype=torch.bfloat16) * 0.2)(B, H, Sk, Dh)),
            "wq": _w((lambda *s: torch.randn(*s, dtype=torch.bfloat16) * 1.6)(D, H * Dh) * (D ** -0.5)),
            "wo": _w((lambda *s: torch.randn(*s, dtype=torch.bfloat16) * 0.2)(H * Dh, D) * ((H * Dh) ** -0.5)),
        }
    _B_in = _B_setup()

    return {
        "A_x": _A_in["x"],
        "A_k_cache": _A_in["k_cache"],
        "A_v_cache": _A_in["v_cache"],
        "A_wq": _A_in["wq"],
        "A_wo": _A_in["wo"],
        "B_x": _B_in["x"],
        "B_k_cache": _B_in["k_cache"],
        "B_v_cache": _B_in["v_cache"],
        "B_wq": _B_in["wq"],
        "B_wo": _B_in["wo"],
    }

def reference(A_x, A_k_cache, A_v_cache, A_wq, A_wo, B_x, B_k_cache, B_v_cache, B_wq, B_wo):
    def _A_ref(x, k_cache, v_cache, wq, wo):
        B, Sq, D = x.shape
        Hq, Dh = 32, 128
        Hkv, Sk = k_cache.shape[1], k_cache.shape[2]
        W = min(4096, max(256, Sk // 4))
        rep = Hq // Hkv
        q = (lambda x, *d: x.permute(*d))((x @ wq).reshape(B, Sq, Hq, Dh), 0, 2, 1, 3)
        k = (lambda x, n, axis: torch.repeat_interleave(x, n, dim=axis))(k_cache[:, :, Sk - W:, :], rep, axis=1)
        v = (lambda x, n, axis: torch.repeat_interleave(x, n, dim=axis))(v_cache[:, :, Sk - W:, :], rep, axis=1)
        scores = torch.einsum("bhqd,bhkd->bhqk", q, k) * (Dh ** -0.5)
        p = _softmax(scores, axis=-1)
        o = torch.einsum("bhqk,bhkd->bhqd", p, v)
        return (lambda x, *d: x.permute(*d))(o, 0, 2, 1, 3).reshape(B, Sq, Hq * Dh) @ wo

    def _B_ref(x, k_cache, v_cache, wq, wo):
        B, Sq, D = x.shape
        H, Dh = 32, 128
        q = (lambda x, *d: x.permute(*d))((x @ wq).reshape(B, Sq, H, Dh), 0, 2, 1, 3)
        scores = torch.einsum("bhqd,bhkd->bhqk", q, k_cache) * (Dh ** -0.5)
        p = _softmax(scores, axis=-1)
        o = torch.einsum("bhqk,bhkd->bhqd", p, v_cache)
        return (lambda x, *d: x.permute(*d))(o, 0, 2, 1, 3).reshape(B, Sq, H * Dh) @ wo

    a = _A_ref(A_x, A_k_cache, A_v_cache, A_wq, A_wo)
    b = _B_ref(B_x, B_k_cache, B_v_cache, B_wq, B_wo)
    return torch.concatenate([a, b], axis=-1)
```

```python
import struct, sys
KN = "concat_heads__sliding_block_cached__mha_block_cached__decode_kernel"
HDR = open("concat_heads__sliding_block_cached__mha_block_cached__decode.s.ref").read().split("; Override launch")[0]

def f32(x): return struct.unpack("<I", struct.pack("<f", x))[0]
CSC = f32(128 ** -0.5 * 1.4426950408889634)
NEG = f32(-3.0e38)

FL = 0x8000
EPOCH, QG, TC, OB, MLB, OA, MLA, YP, WSN = 0, 0x10000, 0x20000, 0x30000, 0x40000, 0x50000, 0x70000, 0x80000, 0x200000
STAMP = 0x200000
QP = 0x100000
QPB = 0x180000
L_EV = 12
L_QF = 16
L_QB = 0x4C00
L_TK, L_DB, L_DA, L_ML, L_Q, L_ST, L_RL, L_OX, L_QL, L_END = 0, 4, 8, 0x100, 0x200, 0x400, 0x3400, 0x4400, 0x4C00, 0x4D00
DPP = "row_mask:0xf bank_mask:0xf"

def gen(fn, TH0=60, sord=8, stamps=False, spin=200000, wo_nt="nt", wq_nt="nt", cx=(3, 5), slp=1, KM=3, slp1=2, kpol="nt", vpol="nt", dbgt=False, trace=False, warm=1, NPF=3, prio=True, mapping=0, first=2, nif=8, late=True, qslp=16, pipe=True, dslp=2, pm=0):
    W, J = 8, 4
    NB, NA = 128, 128
    o = []
    def A(s): o.append("    " + s if not s.endswith(":") else s)
    sWAVE = "s3"
    PK, PV, WS, TS = 32, 36, 40, 44
    sBB, sAB, sOFF, sPK, sPT, sBD, sNK, sTAG, sTH, sC = "s48", "s49", "s50", "s52", "s53", "s54", "s55", "s56", "s57", "s58"
    sX, sJ, sU = "s59", "s60", "s61"
    sCONS, sLC, sKQ, sWOFF = "s62", "s63", "s64", "s65"
    t0, t1, t2, t3 = "s66", "s67", "s68", "s69"
    sSP = "s70"; sWOFF2 = "s71"
    WO = 72
    sSEL0, sSEL1 = "s76", "s77"
    TS2 = 80
    vL16, vLANE, vTC, vZ, vONE, vAT, vTK, vWOV = 0, 1, 2, 3, 4, 5, 6, 7
    vQB = 8
    vQA = 12
    vACC = 20
    vM, vMC, vLs = 36, 38, 40
    vT = 44
    vRING = 64
    vWO = 96
    vX = 96
    vWQ = 96
    vXD = 192
    vWA = 201
    vSL = 204
    vSO = 212
    vTRC = 220
    NV = 224
    sH, sBT = "s31", "s51"
    sO = ["s78", "s79", "s30", "s57"]
    def srd(d, lo, n):
        A(f"s_mov_b32 s{d}, s{lo}"); A(f"s_mov_b32 s{d+1}, s{lo+1}"); A(f"s_mov_b32 s{d+2}, {n}"); A(f"s_mov_b32 s{d+3}, 0x20000")
    def R(b, n=4): return f"v[{b}:{b+n-1}]"
    def stamp(k):
        if stamps: A(f"s_memrealtime s[{84+2*k}:{85+2*k}]")
    NST = 9

    o.append(HDR.rstrip())
    o.append(f"; @launch grid=(256,1,1) block=(512,1,1) lds={L_END}")
    o.append('.amdgcn_target "amdgcn-amd-amdhsa--gfx950"')
    o.append(".text"); o.append(f".globl {KN}"); o.append(".p2align 8"); o.append(f".type {KN},@function"); o.append(f"{KN}:")
    A("s_cmp_ge_u32 s2, 256"); A("s_cbranch_scc1 L_end")
    A("s_load_dwordx16 s[4:19], s[0:1], 0")
    A("s_load_dwordx8 s[20:27], s[0:1], 64")
    A("s_load_dwordx2 s[28:29], s[0:1], 96")
    if stamps:
        for k in range(1, NST): A(f"s_mov_b64 s[{84+2*k}:{85+2*k}], 0")
    stamp(0)
    A("v_lshrrev_b32 v2, 6, v0")
    A(f"v_and_b32 v{vLANE}, 63, v0")
    A(f"v_readfirstlane_b32 {sWAVE}, v2")
    A(f"v_lshlrev_b32 v{vL16}, 4, v{vLANE}")
    A(f"s_and_b32 {sX}, s2, 7"); A(f"s_lshr_b32 {sJ}, s2, 3")
    if mapping == 0:
        A(f"s_lshl_b32 {t0}, {sX}, 2"); A(f"s_lshr_b32 {t1}, {sJ}, 3"); A(f"s_add_u32 {sH}, {t0}, {t1}")
        A(f"s_bfe_u32 {sBT}, {sJ}, 0x10002")
        A(f"s_lshl_b32 {t0}, {sBT}, 7"); A(f"s_lshl_b32 {t1}, {sH}, 2"); A(f"s_add_u32 {sU}, {t0}, {t1}")
        A(f"s_and_b32 {t1}, {sJ}, 3"); A(f"s_add_u32 {sU}, {sU}, {t1}")
    else:
        A(f"s_lshl_b32 {sU}, {sX}, 5"); A(f"s_add_u32 {sU}, {sU}, {sJ}")
        A(f"s_bfe_u32 {sH}, {sU}, 0x50002"); A(f"s_lshr_b32 {sBT}, {sU}, 7")
    A(f"v_mov_b32 v{vZ}, 0")
    A(f"s_mov_b32 s{PK+2}, 134217728"); A(f"s_mov_b32 s{PK+3}, 0x20000")
    A(f"s_mov_b32 s{PV+2}, 134217728"); A(f"s_mov_b32 s{PV+3}, 0x20000")
    A(f"s_mov_b32 s{WS+2}, {WSN if not stamps else 0x300000}"); A(f"s_mov_b32 s{WS+3}, 0x20000")
    A(f"s_lshl_b32 {sBB}, {sU}, 19")
    lgs = {1: 0, 2: 1, 4: 2, 8: 3, 16: 4, 32: 5, 64: 6}.get(sord)
    def boff(dst, t):
        if isinstance(sord, tuple):
            runs = []; i = 0
            while i < 7:
                k = i
                while k + 1 < 7 and sord[k+1] == sord[k] + 1: k += 1
                runs.append((i, k - i + 1, sord[i])); i = k + 1
            src = sBB
            for n_, (lo, n, pos) in enumerate(runs):
                d_ = dst if n_ == len(runs) - 1 else t1
                A(f"s_bfe_u32 {t0}, {t}, {(n << 16) | lo:#x}"); A(f"s_lshl_b32 {t0}, {t0}, {pos}"); A(f"s_add_u32 {d_}, {src}, {t0}")
                src = t1
            return
        if sord == 1:
            A(f"s_lshl_b32 {t0}, {t}, 12"); A(f"s_add_u32 {dst}, {t0}, {sBB}"); return
        A(f"s_and_b32 {t0}, {t}, {sord-1}"); A(f"s_lshl_b32 {t0}, {t0}, {7-lgs}"); A(f"s_lshr_b32 {t1}, {t}, {lgs}"); A(f"s_add_u32 {t0}, {t0}, {t1}")
        A(f"s_lshl_b32 {t0}, {t0}, 12")
        A(f"s_add_u32 {dst}, {t0}, {sBB}")
    def ld(slot, ring=vRING, so=sOFF):
        s_ = PK if slot < J else PV
        A(f"buffer_load_dwordx4 {R(ring+4*slot)}, v{vL16}, s[{s_}:{s_+3}], {so} offen offset:{(slot % J)*1024} {kpol if slot < J else vpol}")
    def kvsrd():
        A(f"s_mov_b32 s{PK}, s16"); A(f"s_mov_b32 s{PK+1}, s17")
        A(f"s_mov_b32 s{PV}, s18"); A(f"s_mov_b32 s{PV+1}, s19")
        A(f"s_mov_b32 s{WS}, s28"); A(f"s_mov_b32 s{WS+1}, s29")
    nset = [0]
    def setup():
        n = nset[0]; nset[0] += 1
        A(f"s_mov_b32 {sCONS}, 0"); A(f"s_mov_b32 {sLC}, 0"); A(f"s_mov_b32 {sKQ}, 0")
        A(f"s_lshr_b32 {t0}, {sX}, 1"); A(f"s_lshl_b32 {t0}, {t0}, 5"); A(f"s_add_u32 {t0}, {t0}, {sJ}")
        A(f"s_bitcmp0_b32 {sX}, 0"); A(f"s_cbranch_scc1 L_cons{n}")
        A(f"s_cmp_lt_u32 {sJ}, 8"); A(f"s_cbranch_scc0 L_consd{n}")
        A(f"s_add_u32 {t0}, {sJ}, 128"); A(f"s_cmp_eq_u32 {sX}, {cx[0]}"); A(f"s_cbranch_scc1 L_cons{n}")
        A(f"s_add_u32 {t0}, {sJ}, 136"); A(f"s_cmp_eq_u32 {sX}, {cx[1]}"); A(f"s_cbranch_scc0 L_consd{n}")
        A(f"L_cons{n}:")
        A(f"s_lshr_b32 {sLC}, {t0}, 3"); A(f"s_and_b32 {sKQ}, {t0}, 7")
        A(f"s_mov_b32 {sCONS}, 1")
        A(f"s_cmp_lt_u32 {sLC}, 9"); A(f"s_cbranch_scc1 L_consd{n}")
        A(f"s_mov_b32 {sCONS}, 2")
        A(f"L_consd{n}:")
        A(f"s_lshl_b32 {t0}, {sJ}, 8"); A(f"s_add_u32 {t0}, {t0}, {TC:#x}")
        A(f"v_mov_b32 v{vTC}, {t0}"); A(f"v_mov_b32 v{vONE}, 1")
        A(f"s_lshl_b32 {sAB}, {sJ}, 21"); A(f"s_add_u32 {sAB}, {sAB}, {6144*256}")
        A(f"s_mov_b32 {sC}, {CSC:#x}")
        A(f"s_cmp_eq_u32 {sCONS}, 2")
        A(f"s_cselect_b32 s{WO}, s22, s12"); A(f"s_cselect_b32 s{WO+1}, s23, s13")
        A(f"s_cselect_b32 {t0}, 9, 0"); A(f"s_sub_u32 {t0}, {sLC}, {t0}")
        A(f"s_cmp_eq_u32 {sCONS}, 0")
        A(f"s_cselect_b32 s{WO+2}, 0, {4096*1152}"); A(f"s_mov_b32 s{WO+3}, 0x20000")
        A(f"s_lshl_b32 {t0}, {t0}, 7")
        A(f"s_mul_i32 {t1}, {sKQ}, {512*1152}"); A(f"s_add_u32 {t0}, {t0}, {t1}")
        A(f"s_mul_i32 {t1}, {sWAVE}, {64*1152}"); A(f"s_add_u32 {sWOFF}, {t0}, {t1}"); A(f"s_add_u32 {sWOFF2}, {sWOFF}, {4*1152}")
        A(f"v_lshrrev_b32 v{vWOV}, 3, v{vLANE}"); A(f"v_mul_u32_u24 v{vWOV}, {8*1152}, v{vWOV}")
        A(f"v_and_b32 v{vTK}, 7, v{vLANE}"); A(f"v_lshl_add_u32 v{vWOV}, v{vTK}, 4, v{vWOV}")
        A(f"s_mov_b32 {sSEL0}, 0x05040100"); A(f"s_mov_b32 {sSEL1}, 0x07060302")
        A(f"s_mov_b32 {sPK}, 0"); A(f"s_mov_b32 {sBD}, 0")
    def init_state():
        for k in range(16): A(f"v_mov_b32 v{vACC+k}, 0")
        for e in range(2):
            A(f"v_mov_b32 v{vM+e}, {NEG:#x}"); A(f"v_mul_f32 v{vMC+e}, {sC}, v{vM+e}"); A(f"v_mov_b32 v{vLs+e}, 0")
    A(f"s_cmp_eq_u32 {sWAVE}, 0"); A("s_cbranch_scc1 L_w0")
    A(f"s_sub_u32 {t2}, {sWAVE}, 1")
    for k in range(NPF + 1):
        boff(sO[k], t2); A(f"s_add_u32 {t2}, {t2}, 7")
    A(f"s_mov_b32 {sPT}, {t2}")
    A("s_waitcnt lgkmcnt(0)")
    kvsrd()
    PF = [(s_, vX + 32 * k, sO[k]) for k in range(NPF) for s_ in range(8)] + [(s_, vRING, sO[NPF]) for s_ in range(8)]
    for a_ in PF[:first]: ld(*a_)
    A("s_barrier")
    for i_, a_ in enumerate(PF):
        if i_ < first: continue
        if i_ >= nif: A(f"s_waitcnt vmcnt({nif-1})")
        ld(*a_)
    stamp(1)
    setup()
    init_state()
    A(f"s_mov_b32 {sSP}, 0")
    A("L_qfw:")
    A(f"ds_read_b64 {R(vT,2)}, v{vZ} offset:{L_QF}")
    A("s_waitcnt lgkmcnt(0)")
    A(f"v_readfirstlane_b32 {t0}, v{vT}"); A(f"v_readfirstlane_b32 {sTAG}, v{vT+1}")
    A("s_nop 3")
    A(f"s_cmp_eq_u32 {t0}, 1"); A("s_cbranch_scc1 L_qfok")
    A(f"s_add_u32 {sSP}, {sSP}, 1"); A(f"s_cmp_lt_u32 {sSP}, {8*spin}"); A("s_cbranch_scc0 L_qfok")
    A("s_sleep 2")
    A("s_branch L_qfw")
    A("L_qfok:")
    A(f"v_and_b32 v{vT}, 0xf0, v{vL16}")
    A(f"ds_read_b128 {R(vQB)}, v{vT} offset:{L_QB}")
    A("s_waitcnt lgkmcnt(0)")
    stamp(3)
    A("s_branch L_peel")
    A("L_w0:")
    if prio: A("s_setprio 3")
    A(f"s_and_b32 {t2}, {sU}, 3"); A(f"s_lshl_b32 {t3}, {sBT}, 2"); A(f"s_add_u32 {t3}, {t3}, {t2}")
    A(f"v_lshrrev_b32 v{vT}, 4, v{vLANE}")
    A(f"v_mul_u32_u24 v{vWA}, {18*8192}, v{vT}")
    A(f"v_and_b32 v{vT+1}, 0xf0, v{vL16}")
    A(f"s_mul_i32 {t0}, {t3}, {72*8192}"); A(f"s_lshl_b32 {t1}, {sH}, 8"); A(f"s_add_u32 {t0}, {t0}, {t1}")
    A(f"v_add3_u32 v{vWA}, v{vWA}, v{vT+1}, {t0}")
    A(f"v_add_u32 v{vWA+1}, 0x2000, v{vWA}")
    A(f"v_bfe_u32 v{vT+1}, v{vLANE}, 3, 1"); A(f"v_mul_u32_u24 v{vT+1}, 1152, v{vT+1}")
    A(f"v_mul_u32_u24 v{vWA+2}, 36, v{vT}")
    A(f"s_mul_i32 {t0}, {t3}, 144")
    A(f"v_add3_u32 v{vWA+2}, v{vWA+2}, v{vT+1}, {t0}")
    A(f"s_mov_b32 s{TS2+2}, {576*8192}"); A(f"s_mov_b32 s{TS2+3}, 0x20000")
    A(f"s_mov_b32 s{TS+2}, 2304"); A(f"s_mov_b32 s{TS+3}, 0x20000")
    A(f"v_mov_b32 v{vT+4}, {7*(NPF+2)+2}"); A(f"v_mov_b32 v{vT+5}, 0"); A(f"v_mov_b32 v{vT+6}, 0"); A(f"v_mov_b32 v{vT+7}, 0")
    A("s_mov_b64 exec, 1")
    A(f"ds_write_b128 v{vZ}, {R(vT+4)}")
    A(f"ds_write_b32 v{vZ}, v{vZ} offset:{L_QF}")
    A("s_mov_b64 exec, -1")
    A("s_waitcnt lgkmcnt(0)")
    A(f"s_mov_b32 s{TS2}, s20"); A(f"s_mov_b32 s{TS2+1}, s21")
    A(f"s_mov_b32 s{TS}, s14"); A(f"s_mov_b32 s{TS+1}, s15")
    Q = []
    def wt(tag):
        A(f"s_waitcnt vmcnt({min(63, len(Q) - 1 - Q.index(tag))})")
    def qloads():
        A(f"buffer_load_dwordx4 {R(vXD)}, v{vWA+2}, s[{TS}:{TS+3}], 0 offen")
        A(f"buffer_load_dwordx4 {R(vXD+4)}, v{vWA+2}, s[{TS}:{TS+3}], 0 offen offset:16")
        A(f"buffer_load_dword v{vXD+8}, v{vWA+2}, s[{TS}:{TS+3}], 0 offen offset:32")
        Q.extend(["x0", "x1", "x"])
        for jj in range(9):
            A(f"s_mov_b32 {t0}, {jj*16384}")
            A(f"buffer_load_dwordx4 {R(vWQ+8*jj)}, v{vWA}, s[{TS2}:{TS2+3}], {t0} offen {wq_nt}")
            A(f"buffer_load_dwordx4 {R(vWQ+8*jj+4)}, v{vWA+1}, s[{TS2}:{TS2+3}], {t0} offen {wq_nt}")
            Q.extend([("w0", jj), ("w1", jj)])
    def qmfma():
        for k in range(4): A(f"v_mov_b32 v{vACC+k}, 0")
        wt("x")
        for jj in range(9):
            for e in range(2):
                for d in range(4): A(f"v_perm_b32 v{vSO+4*e+d}, v{vXD+jj}, v{vXD+jj}, v{vSL+4*e+d}")
            wt(("w0", jj))
            A(f"v_mfma_f32_16x16x32_bf16 {R(vACC)}, {R(vSO)}, {R(vWQ+8*jj)}, {R(vACC)}")
            wt(("w1", jj))
            A(f"v_mfma_f32_16x16x32_bf16 {R(vACC)}, {R(vSO+4)}, {R(vWQ+8*jj+4)}, {R(vACC)}")
        A("s_nop 7")
    def qpub(so):
        for k in range(4): A(f"v_mov_b32 v{vT+8+2*k}, v{vACC+k}")
        A(f"buffer_store_dwordx4 {R(vT+8)}, v{vT+3}, s[{WS}:{WS+3}], {so} offen sc1")
        A(f"buffer_store_dwordx4 {R(vT+12)}, v{vT+3}, s[{WS}:{WS+3}], {so} offen offset:512 sc1")
    qloads()
    kvsrd()
    A(f"buffer_load_dword v{vT+2}, v{vZ}, s[{WS}:{WS+3}], 0 offen sc1")
    Q.append("ep")
    A("s_barrier")
    A(f"v_and_b32 v{vT+4}, 1, v{vLANE}"); A(f"v_cmp_eq_u32 vcc, 1, v{vT+4}")
    A(f"v_mov_b32 v{vT+5}, 0x01000c0c"); A(f"v_mov_b32 v{vT+6}, 0x03020c0c")
    A(f"v_mov_b32 v{vT+11}, 0x0c0c0100"); A(f"v_mov_b32 v{vT+12}, 0x0c0c0302"); A(f"v_mov_b32 v{vT+7}, 0x0c0c0c0c")
    A(f"v_cndmask_b32 v{vT+5}, v{vT+11}, v{vT+5}, vcc"); A(f"v_cndmask_b32 v{vT+6}, v{vT+12}, v{vT+6}, vcc")
    A(f"v_bfe_u32 v{vT+4}, v{vLANE}, 1, 2")
    for d in range(4):
        A(f"v_cmp_eq_u32 vcc, {d}, v{vT+4}"); A("s_nop 1")
        A(f"v_cndmask_b32 v{vSL+d}, v{vT+7}, v{vT+5}, vcc"); A(f"v_cndmask_b32 v{vSL+4+d}, v{vT+7}, v{vT+6}, vcc")
    A(f"v_lshrrev_b32 v{vT+3}, 5, v{vLANE}"); A(f"v_lshlrev_b32 v{vT+3}, 13, v{vT+3}")
    A(f"v_and_b32 v{vT+5}, 15, v{vLANE}"); A(f"v_lshl_add_u32 v{vT+3}, v{vT+5}, 5, v{vT+3}")
    A(f"v_and_b32 v{vT+5}, 16, v{vLANE}"); A(f"v_add_u32 v{vT+3}, v{vT+3}, v{vT+5}")
    A(f"s_lshl_b32 {t0}, {sH}, 14"); A(f"s_add_u32 {t0}, {t0}, {QPB:#x}"); A(f"s_lshl_b32 {t1}, {t3}, 10"); A(f"s_add_u32 {sO[0]}, {t0}, {t1}")
    A(f"s_lshl_b32 {t1}, {sBT}, 13"); A(f"s_add_u32 {sO[2]}, {t0}, {t1}"); A(f"s_add_u32 {sO[3]}, {sO[2]}, 4096")
    A(f"s_lshl_b32 {t0}, {sJ}, 14"); A(f"s_lshl_b32 {t1}, {sX}, 10"); A(f"s_add_u32 {t0}, {t0}, {t1}"); A(f"s_add_u32 {sO[1]}, {t0}, {QP:#x}")
    A(f"s_sub_u32 {t0}, {sJ}, {sH}"); A(f"s_lshl_b32 {t0}, {t0}, 8")
    A(f"s_sub_u32 {t1}, {sX}, {t3}"); A(f"s_mul_i32 {t2}, {t1}, {72*8192}"); A(f"s_add_u32 {t0}, {t0}, {t2}")
    A(f"s_mul_i32 {t1}, {t1}, 144")
    A(f"v_add_u32 v{vWA}, {t0}, v{vWA}"); A(f"v_add_u32 v{vWA+1}, {t0}, v{vWA+1}"); A(f"v_add_u32 v{vWA+2}, {t1}, v{vWA+2}")
    A(f"s_mov_b32 s{TS2}, s10"); A(f"s_mov_b32 s{TS2+1}, s11")
    A(f"s_mov_b32 s{TS}, s4"); A(f"s_mov_b32 s{TS+1}, s5")
    setup()
    A(f"s_lshl_b32 {t0}, {sU}, 8"); A(f"s_add_u32 {t0}, {t0}, {OB:#x}")
    A(f"s_lshl_b32 {t1}, {sJ}, 4"); A(f"s_add_u32 {t1}, {t1}, {sX}")
    A(f"s_lshl_b32 {t2}, {t1}, 8"); A(f"s_add_u32 {t2}, {t2}, {OA - 2048:#x}")
    A(f"v_lshlrev_b32 v{vT+5}, 11, v{vT}"); A(f"v_add_u32 v{vT+5}, {t2}, v{vT+5}")
    A(f"v_mov_b32 v{vT+6}, {t0}")
    A(f"v_cmp_eq_u32 vcc, 0, v{vT}"); A("s_nop 1")
    A(f"v_cndmask_b32 v{vT+5}, v{vT+5}, v{vT+6}, vcc")
    A(f"v_and_b32 v{vT+6}, 0xf0, v{vL16}"); A(f"v_add_u32 v{vQA}, v{vT+5}, v{vT+6}")
    for k in range(4): A(f"v_mov_b32 v{vQA+4+k}, -1")
    A(f"s_lshl_b32 {t0}, {sU}, 3"); A(f"s_add_u32 {t0}, {t0}, {MLB:#x}")
    A(f"s_lshl_b32 {t2}, {t1}, 3"); A(f"s_add_u32 {t2}, {t2}, {MLA - 64:#x}")
    A(f"v_lshlrev_b32 v{vT+5}, 6, v{vLANE}"); A(f"v_add_u32 v{vT+5}, {t2}, v{vT+5}")
    A(f"v_mov_b32 v{vT+6}, {t0}")
    A(f"v_cmp_eq_u32 vcc, 0, v{vLANE}"); A("s_nop 1")
    A(f"v_cndmask_b32 v{vQA+1}, v{vT+5}, v{vT+6}, vcc")
    A(f"s_lshl_b32 {t3}, {sLC}, 3"); A(f"s_add_u32 {t3}, {t3}, {sKQ}"); A(f"s_lshl_b32 {t3}, {t3}, 9"); A(f"s_add_u32 {t3}, {t3}, {YP:#x}")
    qmfma()
    wt("ep")
    A(f"v_readfirstlane_b32 {t0}, v{vT+2}")
    A("s_nop 3")
    A(f"s_mul_i32 {sTAG}, {t0}, 0x9E3779B1"); A(f"s_add_u32 {sTAG}, {sTAG}, 0x7F4A7C15")
    for k in range(4): A(f"v_mov_b32 v{vT+9+2*k}, {sTAG}")
    qpub(sO[0])
    stamp(1)
    A("s_mov_b64 exec, 1")
    A(f"s_cmp_eq_u32 {sX}, 0"); A("s_cbranch_scc0 L_notc")
    A(f"buffer_store_dword v{vZ}, v{vTC}, s[{WS}:{WS+3}], 0 offen sc1")
    A("L_notc:")
    A("s_mov_b64 exec, 7")
    A(f"buffer_store_dwordx2 {R(vQA+4,2)}, v{vQA+1}, s[{WS}:{WS+3}], 0 offen sc1")
    A("s_mov_b32 exec_lo, -1"); A("s_mov_b32 exec_hi, 0xffff")
    A(f"buffer_store_dwordx4 {R(vQA+4)}, v{vQA}, s[{WS}:{WS+3}], 0 offen sc1")
    A("s_mov_b32 exec_hi, 0")
    A(f"s_cmp_eq_u32 {sCONS}, 0"); A("s_cbranch_scc1 L_noyc")
    A(f"buffer_store_dwordx4 {R(vQA+4)}, v{vL16}, s[{WS}:{WS+3}], {t3} offen sc1")
    A("L_noyc:")
    A("s_mov_b64 exec, -1")
    G = vRING
    def polls():
        for k in range(8):
            A(f"buffer_load_dwordx4 {R(G+4*k)}, v{vL16}, s[{WS}:{WS+3}], {sO[2+(k>>2)]} offen offset:{(k&3)*1024} sc1")
    if late:
        Q.clear()
        qloads()
        qmfma()
        qpub(sO[1])
        stamp(2)
        polls()
        A(f"s_mov_b32 {sSP}, 0")
        A(f"s_waitcnt vmcnt(0)")
    else:
        polls()
        Q.clear()
        qloads()
        A(f"s_mov_b32 {sSP}, 0")
        A(f"s_waitcnt vmcnt({len(Q)})")
    A("L_qpoll:")
    tg = [G + 2 * k + 1 for k in range(16)]
    for r_ in tg: A(f"v_xor_b32 v{r_}, {sTAG}, v{r_}")
    A(f"v_or3_b32 v{vT+4}, v{tg[0]}, v{tg[1]}, v{tg[2]}"); A(f"v_or3_b32 v{vT+5}, v{tg[3]}, v{tg[4]}, v{tg[5]}")
    for k in range(5): A(f"v_or3_b32 v{vT+4+(k&1)}, v{vT+4+(k&1)}, v{tg[6+2*k]}, v{tg[7+2*k]}")
    A(f"v_or_b32 v{vT+4}, v{vT+4}, v{vT+5}")
    A(f"v_cmp_ne_u32 vcc, 0, v{vT+4}")
    A("s_cbranch_vccz L_qok")
    A(f"s_add_u32 {sSP}, {sSP}, 1"); A(f"s_cmp_lt_u32 {sSP}, {spin}"); A("s_cbranch_scc0 L_qok")
    if late: A(f"s_sleep {qslp}")
    polls()
    A("s_waitcnt vmcnt(0)")
    A("s_branch L_qpoll")
    A("L_qok:")
    for n in (4, 2, 1):
        for k in range(n):
            for c in (0, 2): A(f"v_add_f32 v{G+4*k+c}, v{G+4*k+c}, v{G+4*(k+n)+c}")
    A(f"v_and_b32 v{vT+4}, 31, v{vLANE}"); A(f"v_lshlrev_b32 v{vT+4}, 3, v{vT+4}")
    A(f"v_lshrrev_b32 v{vT+5}, 5, v{vLANE}"); A(f"v_lshl_add_u32 v{vT+4}, v{vT+5}, 2, v{vT+4}")
    A(f"v_cvt_pk_bf16_f32 v{vT+5}, v{G}, v{G+2}")
    A(f"v_mov_b32 v{vT+6}, 1"); A(f"v_mov_b32 v{vT+7}, {sTAG}")
    A(f"ds_write_b32 v{vT+4}, v{vT+5} offset:{L_QB}")
    A("s_mov_b64 exec, 1")
    A("s_waitcnt lgkmcnt(0)")
    A(f"ds_write_b64 v{vZ}, {R(vT+6,2)} offset:{L_QF}")
    stamp(3)
    A(f"s_lshl_b32 {t0}, s2, 2"); A(f"s_add_u32 {t0}, {t0}, {FL:#x}")
    A(f"buffer_store_dword v{vT+7}, v{vZ}, s[{WS}:{WS+3}], {t0} offen sc1")
    Q.append("fl")
    A("s_mov_b64 exec, -1")
    if prio: A(f"s_setprio {1 if pm else 0}")
    if pm == 3: A(f"s_mov_b32 {sTH}, 0")
    A(f"s_mov_b32 {t2}, {7*(NPF+2)}"); boff(sOFF, t2); A(f"s_mov_b32 {sPT}, {7*(NPF+2)+1}")
    for s_ in range(8):
        ld(s_); Q.append(("kv", s_))
    A(f"v_and_b32 v{vT+4}, 0xf0, v{vL16}")
    A(f"ds_read_b128 {R(vQB)}, v{vT+4} offset:{L_QB}")
    if not late:
        qmfma()
        qpub(sO[1])
        stamp(2)
    A("s_waitcnt lgkmcnt(0)")
    init_state()
    if trace:
        A("s_mov_b32 m0, 0"); A(f"v_mov_b32 v{vTRC}, 0")
    A("s_branch L_B")

    def event():
        G = vWQ
        A("s_mov_b64 exec, -1")
        A(f"s_and_b32 {t0}, {sJ}, 15"); A(f"s_lshl_b32 {t0}, {t0}, 15"); A(f"s_lshr_b32 {t1}, {sJ}, 4"); A(f"s_lshl_b32 {t1}, {t1}, 13")
        A(f"s_add_u32 {t0}, {t0}, {t1}"); A(f"s_add_u32 {t0}, {t0}, {QP:#x}")
        A(f"s_add_u32 {t1}, {t0}, 4096"); A(f"s_add_u32 {t2}, {t0}, 16384"); A(f"s_add_u32 {t3}, {t0}, 20480")
        A(f"v_add_u32 v{vT}, {FL:#x}, v{vL16}")
        if warm:
            A("s_mov_b64 exec, 1")
            srd(TS, 6, 67108864); srd(TS2, 8, 67108864)
            A(f"buffer_load_dword v{vT+4}, v{vZ}, s[{TS}:{TS+3}], {sAB} offen nt")
            A(f"buffer_load_dword v{vT+5}, v{vZ}, s[{TS2}:{TS2+3}], {sAB} offen nt")
            A(f"s_mul_i32 {sSP}, {sWAVE}, {64*1152}"); A(f"s_sub_u32 {sSP}, {sWOFF}, {sSP}")
            A(f"buffer_load_dword v{vT+6}, v{vZ}, s[{WO}:{WO+3}], {sSP} offen nt")
            A(f"s_add_u32 {sSP}, {sSP}, {511*1152}")
            A(f"buffer_load_dword v{vT+7}, v{vZ}, s[{WO}:{WO+3}], {sSP} offen nt")
            srd(TS, 24, 2304 * 2)
            A(f"buffer_load_dword v{vT+8}, v{vZ}, s[{TS}:{TS+3}], 0 offen")
            A("s_mov_b64 exec, -1")
        A(f"s_mov_b32 {sSP}, 0")
        A("L_evpoll:")
        for k in range(16):
            A(f"buffer_load_dwordx4 {R(G+4*k)}, v{vL16}, s[{WS}:{WS+3}], {(t0,t1,t2,t3)[k>>2]} offen offset:{(k&3)*1024} sc1")
        A(f"buffer_load_dwordx4 {R(G+64)}, v{vT}, s[{WS}:{WS+3}], 0 offen sc1")
        A("s_waitcnt vmcnt(0)")
        tg = [G + 2 * k + 1 for k in range(32)] + [G + 64 + k for k in range(4)]
        for r_ in tg: A(f"v_xor_b32 v{r_}, {sTAG}, v{r_}")
        A(f"v_or3_b32 v{vT+1}, v{tg[0]}, v{tg[1]}, v{tg[2]}"); A(f"v_or3_b32 v{vT+2}, v{tg[3]}, v{tg[4]}, v{tg[5]}")
        for k in range(15): A(f"v_or3_b32 v{vT+1+(k&1)}, v{vT+1+(k&1)}, v{tg[6+2*k]}, v{tg[7+2*k]}")
        A(f"v_or_b32 v{vT+1}, v{vT+1}, v{vT+2}")
        A(f"v_cmp_ne_u32 vcc, 0, v{vT+1}")
        A("s_cbranch_vccz L_evok")
        A(f"s_add_u32 {sSP}, {sSP}, 1"); A(f"s_cmp_lt_u32 {sSP}, {spin}"); A("s_cbranch_scc0 L_evok")
        A("s_sleep 8")
        A("s_branch L_evpoll")
        A("L_evok:")
        for n in (4, 2, 1):
            for e in range(2):
                for k in range(n):
                    for c in (0, 2):
                        A(f"v_add_f32 v{G+32*e+4*k+c}, v{G+32*e+4*k+c}, v{G+32*e+4*(k+n)+c}")
        A(f"v_and_b32 v{vT}, 31, v{vLANE}"); A(f"v_lshlrev_b32 v{vT}, 3, v{vT}")
        A(f"v_lshrrev_b32 v{vT+1}, 5, v{vLANE}"); A(f"v_lshl_add_u32 v{vT}, v{vT+1}, 2, v{vT}")
        A(f"v_cvt_pk_bf16_f32 v{vT+2}, v{G}, v{G+2}"); A(f"v_cvt_pk_bf16_f32 v{vT+3}, v{G+32}, v{G+34}")
        A(f"ds_write2st64_b32 v{vT}, v{vT+2}, v{vT+3} offset0:{L_Q//256} offset1:{L_Q//256+1}")
        A("s_mov_b64 exec, 1")
        A("s_waitcnt lgkmcnt(0)")
        A(f"ds_write_b32 v{vZ}, v{vONE} offset:{L_EV}")
        A(f"s_cmp_eq_u32 s2, 0"); A("s_cbranch_scc0 L_ev_noep")
        A(f"v_mov_b32 v{vT+1}, {sTAG}")
        A(f"buffer_store_dword v{vT+1}, v{vZ}, s[{WS}:{WS+3}], 0 offen sc1")
        A("L_ev_noep:")

    def getqa():
        A(f"s_mov_b32 {sSP}, 0")
        A("L_qaw:")
        A(f"ds_read_b32 v{vTK}, v{vZ} offset:{L_EV}")
        A("s_waitcnt lgkmcnt(0)")
        A(f"v_readfirstlane_b32 {t0}, v{vTK}")
        A("s_nop 3")
        A(f"s_cmp_eq_u32 {t0}, 1"); A("s_cbranch_scc1 L_qaok")
        A(f"s_add_u32 {sSP}, {sSP}, 1"); A(f"s_cmp_lt_u32 {sSP}, {4*spin}"); A("s_cbranch_scc0 L_qaok")
        A("s_sleep 8")
        A("s_branch L_qaw")
        A("L_qaok:")
        A("s_mov_b64 exec, -1")
        A(f"v_and_b32 v{vT}, 0xf0, v{vL16}")
        A(f"ds_read_b128 {R(vQA)}, v{vT} offset:{L_Q}")
        A(f"ds_read_b128 {R(vQA+4)}, v{vT} offset:{L_Q+256}")
        A("s_waitcnt lgkmcnt(0)")
        A("s_mov_b64 exec, 1")

    def wold(i):
        so = sWOFF if i < 4 else sWOFF2
        A(f"buffer_load_dwordx4 {R(vWO+4*i)}, v{vWOV}, s[{WO}:{WO+3}], {so} offen offset:{(i%4)*1152} {wo_nt}")

    def compute(isA, ring, reload, waits):
        NH = 2 if isA else 1
        S = lambda e, j: vT + e * 4 + j
        PL = lambda e, j: vT + 8 + e * 4 + j
        X = vT + 16
        for j in range(J):
            waits(j)
            k = ring + 4 * j
            for e in range(NH): A(f"v_mov_b32 v{S(e,j)}, 0")
            for d in range(4):
                for e in range(NH):
                    q = (vQA + 4 * e) if isA else vQB
                    A(f"v_dot2c_f32_bf16 v{S(e,j)}, v{k+d}, v{q+d}")
            reload(j)
        A("s_nop 2")
        for mode in ("quad_perm:[1,0,3,2]", "quad_perm:[2,3,0,1]", "row_half_mirror", "row_mirror"):
            for e in range(NH):
                for j in range(J):
                    A(f"v_add_f32_dpp v{S(e,j)}, v{S(e,j)}, v{S(e,j)} {mode} {DPP}")
        for e in range(NH): A(f"v_max3_f32 v{X+e}, v{S(e,0)}, v{S(e,1)}, v{vM+e}")
        for e in range(NH): A(f"v_max3_f32 v{vM+e}, v{S(e,2)}, v{S(e,3)}, v{X+e}")
        for e in range(NH): A(f"v_mul_f32 v{X+e}, {sC}, v{vM+e}")
        for e in range(NH): A(f"v_sub_f32 v{X+2+e}, v{vMC+e}, v{X+e}")
        for e in range(NH): A(f"v_exp_f32 v{X+2+e}, v{X+2+e}")
        for e in range(NH):
            for j in range(J): A(f"v_fma_f32 v{S(e,j)}, v{S(e,j)}, {sC}, -v{X+e}")
        for e in range(NH):
            for j in range(J): A(f"v_exp_f32 v{S(e,j)}, v{S(e,j)}")
        for e in range(NH):
            A(f"v_mov_b32 v{vMC+e}, v{X+e}")
            A(f"v_mul_f32 v{vLs+e}, v{vLs+e}, v{X+2+e}")
            for k in range(8): A(f"v_mul_f32 v{vACC+8*e+k}, v{vACC+8*e+k}, v{X+2+e}")
        for e in range(NH):
            for j in range(J): A(f"v_cvt_pk_bf16_f32 v{PL(e,j)}, v{S(e,j)}, 0")
        for e in range(NH):
            for j in range(J): A(f"v_lshlrev_b32 v{S(e,j)}, 16, v{PL(e,j)}")
        for e in range(NH):
            A(f"v_add_f32 v{X}, v{S(e,0)}, v{S(e,1)}"); A(f"v_add_f32 v{X+1}, v{S(e,2)}, v{S(e,3)}")
            A(f"v_add_f32 v{vLs+e}, v{vLs+e}, v{X}"); A(f"v_add_f32 v{vLs+e}, v{vLs+e}, v{X+1}")
        for j in range(J):
            waits(J + j)
            k = ring + 4 * (J + j)
            for d in range(4):
                for e in range(NH):
                    A(f"v_dot2c_f32_bf16 v{vACC+8*e+2*d}, v{k+d}, v{PL(e,j)}")
                    A(f"v_dot2c_f32_bf16 v{vACC+8*e+2*d+1}, v{k+d}, v{S(e,j)}")
            reload(J + j)

    A("L_peel:")
    if pm in (1, 2): A("s_setprio 1")
    if pm == 2:
        A(f"s_cmp_lt_u32 {sWAVE}, 4"); A("s_cbranch_scc1 L_pm2"); A("s_setprio 2"); A("L_pm2:")
    if pm == 3: A(f"s_lshr_b32 {sTH}, {sWAVE}, 2")
    for k in range(NPF):
        compute(False, vX + 32 * k, lambda s_: None, lambda s_: A(f"s_waitcnt vmcnt({8*(NPF-k)+7-s_})"))
        A("s_nop 2")
    if trace:
        A("s_mov_b32 m0, 0"); A(f"v_mov_b32 v{vTRC}, 0")

    W7 = lambda s_: A(f"s_waitcnt vmcnt({2*J-1})") if s_ else None
    def body(lbl, isA):
        A(f"{lbl}:")
        if pm == 3:
            A(f"s_xor_b32 {sTH}, {sTH}, 1"); A(f"s_cmp_eq_u32 {sTH}, 0"); A(f"s_cbranch_scc1 {lbl}_pr1")
            A("s_setprio 2"); A(f"s_branch {lbl}_pr2"); A(f"{lbl}_pr1:"); A("s_setprio 1"); A(f"{lbl}_pr2:")
        A(f"s_waitcnt vmcnt({2*J-1})")
        if trace:
            A("s_memrealtime s[100:101]"); A("s_waitcnt lgkmcnt(0)")
            A(f"s_lshl_b32 s100, s100, 1"); A(f"s_or_b32 s100, s100, {1 if isA else 0}")
            A(f"v_writelane_b32 v{vTRC}, s100, m0"); A("s_add_u32 m0, m0, 1")
        if not isA:
            A(f"s_cmp_eq_u32 {sPK}, 0"); A(f"s_cbranch_scc0 {lbl}_r1")
            boff(sOFF, sPT); A(f"s_mov_b32 {sNK}, 0"); A(f"s_branch {lbl}_r3")
            A(f"{lbl}_r1:")
        A(f"v_readfirstlane_b32 {t0}, v{vAT}")
        A("s_nop 3")
        A(f"s_cmp_lt_u32 {t0}, {NA}"); A(f"s_cbranch_scc0 {lbl}_drain")
        A(f"s_lshl_b32 {t0}, {t0}, 12"); A(f"s_add_u32 {sOFF}, {t0}, {sAB}"); A(f"s_mov_b32 {sNK}, 1")
        if not isA:
            srd(PK, 6, 67108864); srd(PV, 8, 67108864)
        A(f"{lbl}_r3:")
        A("s_mov_b64 exec, 1")
        if not isA:
            A(f"s_cmp_eq_u32 {sBD}, 1"); A(f"s_cbranch_scc1 {lbl}_g1")
            A(f"ds_add_rtn_u32 v{vTK}, v{vZ}, v{vONE} offset:{L_TK}")
            A("s_waitcnt lgkmcnt(0)")
            A(f"v_readfirstlane_b32 {sPT}, v{vTK}")
            A("s_nop 3")
            A(f"s_cmp_eq_u32 {sPT}, {TH0}"); A(f"s_cbranch_scc0 {lbl}_noev")
            event()
            A(f"{lbl}_noev:")
            A(f"s_cmp_lt_u32 {sPT}, {NB}"); A(f"s_cbranch_scc1 {lbl}_g2")
            A(f"s_mov_b32 {sBD}, 1")
            getqa()
            A(f"{lbl}_g1:")
        A(f"v_mov_b32 v{vAT}, 1")
        A(f"buffer_atomic_add v{vAT}, v{vTC}, s[{WS}:{WS+3}], 0 offen sc0")
        A(f"s_mov_b32 {sPK}, 1")
        A(f"{lbl}_g2:")
        A("s_mov_b64 exec, -1")
        compute(isA, vRING, ld, W7)
        if not isA:
            A(f"s_cmp_eq_u32 {sNK}, 0"); A("s_cbranch_scc1 L_B")
            A(f"s_branch {lbl}_out")
        else:
            A("s_branch L_A")
        A(f"{lbl}_drain:")
        A(f"s_mov_b32 {sNK}, 2")
        compute(isA, vRING, wold, W7)
        A(f"{lbl}_out:")

    def finish(lbl, heads, cnt_off, isA):
        X = vT
        E_ = [e for (e, hs) in heads]
        a_ = lambda e: X + 2 * e
        b_ = lambda e: X + 2 * e + 1
        c_ = lambda e: X + 4 + e
        for e in E_: A(f"v_mov_b32 v{a_(e)}, v{vMC+e}"); A(f"v_mov_b32 v{b_(e)}, v{vMC+e}")
        A(f"v_and_b32 v{X+8}, 15, v{vLANE}"); A(f"v_lshlrev_b32 v{X+8}, 5, v{X+8}")
        for e in E_: A(f"v_permlane32_swap_b32 v{a_(e)}, v{b_(e)}")
        for e in E_: A(f"v_max_f32 v{a_(e)}, v{a_(e)}, v{b_(e)}"); A(f"v_mov_b32 v{b_(e)}, v{a_(e)}")
        A(f"v_lshrrev_b32 v{X+9}, 4, v{vLANE}"); A(f"v_lshl_add_u32 v{X+8}, v{X+9}, 3, v{X+8}")
        for e in E_: A(f"v_permlane16_swap_b32 v{a_(e)}, v{b_(e)}")
        for e in E_: A(f"v_max_f32 v{a_(e)}, v{a_(e)}, v{b_(e)}")
        for e in E_: A(f"v_sub_f32 v{b_(e)}, v{vMC+e}, v{a_(e)}")
        for e in E_: A(f"v_exp_f32 v{b_(e)}, v{b_(e)}")
        A(f"s_lshl_b32 {t0}, {sWAVE}, 9"); A(f"v_add_u32 v{X+8}, {t0}, v{X+8}")
        for e in E_:
            for k in range(8): A(f"v_mul_f32 v{vACC+8*e+k}, v{vACC+8*e+k}, v{b_(e)}")
            A(f"v_mul_f32 v{b_(e)}, v{vLs+e}, v{b_(e)}")
            A(f"v_mov_b32 v{c_(e)}, v{b_(e)}")
        for e in E_:
            for k in range(4): A(f"v_permlane32_swap_b32 v{vACC+8*e+k}, v{vACC+8*e+k+4}")
            A(f"v_permlane32_swap_b32 v{b_(e)}, v{c_(e)}")
        for e in E_:
            A(f"v_add_f32 v{b_(e)}, v{b_(e)}, v{c_(e)}"); A(f"v_mov_b32 v{c_(e)}, v{b_(e)}")
            for k in range(4): A(f"v_add_f32 v{vACC+8*e+k}, v{vACC+8*e+k}, v{vACC+8*e+k+4}")
        A(f"s_lshl_b32 {t0}, {sWAVE}, 3"); A(f"v_mov_b32 v{X+9}, {t0}")
        for e in E_:
            A(f"v_permlane16_swap_b32 v{b_(e)}, v{c_(e)}")
            A(f"v_permlane16_swap_b32 v{vACC+8*e}, v{vACC+8*e+2}")
            A(f"v_permlane16_swap_b32 v{vACC+8*e+1}, v{vACC+8*e+3}")
        for e in E_:
            A(f"v_add_f32 v{vACC+8*e}, v{vACC+8*e}, v{vACC+8*e+2}")
            A(f"v_add_f32 v{vACC+8*e+1}, v{vACC+8*e+1}, v{vACC+8*e+3}")
            A(f"v_add_f32 v{b_(e)}, v{b_(e)}, v{c_(e)}")
        for (e, hs) in heads:
            A(f"ds_write_b64 v{X+8}, {R(vACC+8*e,2)} offset:{L_ST+hs*4096}")
        if isA:
            A(f"v_lshrrev_b32 v{X+17}, 5, v{vLANE}"); A(f"v_and_b32 v{X+16}, 0x1f0, v{vL16}")
            A(f"v_lshl_add_u32 v{X+16}, v{X+17}, 12, v{X+16}"); A(f"v_lshlrev_b32 v{X+17}, 6, v{X+17}")
        else:
            A(f"v_lshlrev_b32 v{X+16}, 3, v{vLANE}")
        A("s_mov_b64 exec, 1")
        for (e, hs) in heads:
            A(f"ds_write_b64 v{X+9}, {R(X+2*e,2)} offset:{L_ML+hs*64}")
        A(f"ds_add_rtn_u32 v{vTK}, v{vZ}, v{vONE} offset:{cnt_off}")
        A("s_mov_b64 exec, -1")
        hs0 = heads[0][1]
        D = vRING if isA else vACC
        ND = 4 if isA else 2
        for k in range(4): A(f"ds_read_b128 {R(X+4*k)}, v{X+17 if isA else vZ} offset:{L_ML+hs0*64+16*k}")
        for w in range(8):
            if w == 4: A("s_waitcnt lgkmcnt(8)")
            A(f"ds_read_b{32*ND} {R(D+ND*w,ND)}, v{X+16} offset:{L_ST+hs0*4096+w*512}")
        if isA:
            A(f"s_lshl_b32 {t2}, {sJ}, 4"); A(f"s_add_u32 {t2}, {t2}, {sX}")
            A(f"s_lshl_b32 {t0}, {t2}, 8"); A(f"s_add_u32 {t0}, {t0}, {OA:#x}")
            A(f"s_lshl_b32 {t1}, {t2}, 3"); A(f"s_add_u32 {t1}, {t1}, {MLA:#x}")
            A(f"v_lshrrev_b32 v{X+16}, 1, v{X+16}")
        else:
            A(f"s_lshl_b32 {t0}, {sU}, 8"); A(f"s_add_u32 {t0}, {t0}, {OB:#x}")
            A(f"s_lshl_b32 {t1}, {sU}, 3"); A(f"s_add_u32 {t1}, {t1}, {MLB:#x}")
            A(f"v_lshlrev_b32 v{X+16}, 2, v{vLANE}")
        A(f"v_readfirstlane_b32 {t2}, v{vTK}")
        A("s_waitcnt lgkmcnt(8)")
        A("s_nop 1")
        A(f"s_cmp_eq_u32 {t2}, {W-1}"); A(f"s_cbranch_scc0 {lbl}_skip")
        Mx, Lx = X + 18, X + 19
        A(f"v_max3_f32 v{Mx}, v{X}, v{X+2}, v{X+4}"); A(f"v_max3_f32 v{Lx}, v{X+6}, v{X+8}, v{X+10}")
        A(f"v_max3_f32 v{Mx}, v{Mx}, v{X+12}, v{X+14}"); A(f"v_max_f32 v{Mx}, v{Mx}, v{Lx}")
        for w in range(8): A(f"v_sub_f32 v{X+2*w}, v{X+2*w}, v{Mx}")
        for w in range(8): A(f"v_exp_f32 v{X+2*w}, v{X+2*w}")
        A("s_waitcnt lgkmcnt(0)")
        for k in range(ND): A(f"v_mul_f32 v{D+k}, v{X}, v{D+k}")
        A(f"v_mul_f32 v{Lx}, v{X}, v{X+1}")
        for w in range(1, 8):
            for k in range(ND): A(f"v_fmac_f32 v{D+k}, v{X+2*w}, v{D+ND*w+k}")
            A(f"v_fmac_f32 v{Lx}, v{X+2*w}, v{X+2*w+1}")
        P = D + 4
        A(f"v_cvt_pk_bf16_f32 v{P}, v{D}, v{D+1}")
        if isA: A(f"v_cvt_pk_bf16_f32 v{P+1}, v{D+2}, v{D+3}")
        A(f"v_min_u32 v{P}, -2, v{P}")
        if isA: A(f"v_min_u32 v{P+1}, -2, v{P+1}")
        A(f"v_min_u32 v{Mx}, -2, v{Mx}"); A(f"v_min_u32 v{Lx}, -2, v{Lx}")
        if isA:
            A(f"v_mov_b32_dpp v{P+2}, v{P} quad_perm:[1,1,3,3] {DPP}")
            A(f"v_mov_b32_dpp v{P+3}, v{P+1} quad_perm:[1,1,3,3] {DPP}")
            A("s_mov_b32 exec_lo, 0x55555555"); A("s_mov_b32 exec_hi, 0x55555555")
            A(f"buffer_store_dwordx4 {R(P)}, v{X+16}, s[{WS}:{WS+3}], {t0} offen sc1")
            A("s_mov_b32 exec_lo, 1"); A("s_mov_b32 exec_hi, 1")
            A(f"buffer_store_dwordx2 {R(Mx,2)}, v{X+17}, s[{WS}:{WS+3}], {t1} offen sc1")
        else:
            A(f"v_mov_b32_dpp v{P+1}, v{P} quad_perm:[1,1,1,1] {DPP}")
            A(f"v_mov_b32_dpp v{P+2}, v{P} quad_perm:[2,2,2,2] {DPP}")
            A(f"v_mov_b32_dpp v{P+3}, v{P} quad_perm:[3,3,3,3] {DPP}")
            A("s_mov_b32 exec_lo, 0x11111111"); A("s_mov_b32 exec_hi, 0x11111111")
            A(f"buffer_store_dwordx4 {R(P)}, v{X+16}, s[{WS}:{WS+3}], {t0} offen sc1")
            A("s_mov_b64 exec, 1")
            A(f"buffer_store_dwordx2 {R(Mx,2)}, v{vZ}, s[{WS}:{WS+3}], {t1} offen sc1")
        A("s_mov_b64 exec, -1")
        A("s_nop 1")
        A(f"{lbl}_skip:")
        A("s_waitcnt lgkmcnt(0)")

    def slotB(e):
        A(f"s_lshl_b32 {t0}, {sU}, 8"); A(f"s_add_u32 {t0}, {t0}, {OB:#x}")
        A(f"s_lshl_b32 {t1}, {sU}, 3"); A(f"s_add_u32 {t1}, {t1}, {MLB:#x}")
    def slotA(e):
        A(f"s_lshl_b32 {t2}, {sJ}, 4"); A(f"s_add_u32 {t2}, {t2}, {sX}"); A(f"s_add_u32 {t2}, {t2}, {8*e}")
        A(f"s_lshl_b32 {t0}, {t2}, 8"); A(f"s_add_u32 {t0}, {t0}, {OA:#x}")
        A(f"s_lshl_b32 {t1}, {t2}, 3"); A(f"s_add_u32 {t1}, {t1}, {MLA:#x}")

    body("L_B", False)
    stamp(4)
    finish("L_fB", [(0, 0)], L_DB, False)
    init_state()
    A(f"s_cmp_eq_u32 {sNK}, 1"); A("s_cbranch_scc0 L_Adone")
    body("L_A", True)
    A("L_Adone:")
    stamp(5)
    finish("L_fA", [(0, 1), (1, 2)], L_DA, True)
    if pm: A("s_setprio 0")
    A(f"s_cmp_eq_u32 {sCONS}, 0"); A("s_cbranch_scc1 L_fin")
    X = vT
    A(f"s_lshl_b32 {t2}, {sKQ}, 2"); A(f"s_lshr_b32 {t0}, {sWAVE}, 1"); A(f"s_add_u32 {t2}, {t2}, {t0}")
    A(f"s_and_b32 {t3}, {sWAVE}, 1"); A(f"s_lshl_b32 {t3}, {t3}, 7")
    A(f"v_lshrrev_b32 v{X+2}, 5, v{vLANE}")
    A(f"v_and_b32 v{X+3}, 31, v{vLANE}"); A(f"v_lshlrev_b32 v{X+3}, 2, v{X+3}")
    WX = {}
    def prepack():
        free = vWO + 32
        for p in range(4):
            for d in range(4):
                a = vWO + 8 * p + d; b = vWO + 8 * p + 4 + d
                A(f"v_perm_b32 v{free}, v{b}, v{a}, {sSEL0}")
                A(f"v_perm_b32 v{b}, v{b}, v{a}, {sSEL1}")
                WX[(p, 2 * d)] = free; WX[(p, 2 * d + 1)] = b
                free = a
    A(f"s_cmp_eq_u32 {sCONS}, 1"); A("s_cbranch_scc1 L_gA")
    def gather(lbl, S, OBASE, MLBASE):
        SETS = [(132, 148), (160, 176)]
        NL = S + S // 2
        lg = {4: 10, 8: 11}[S]
        A(f"{lbl}:")
        A(f"v_lshl_add_u32 v{X}, v{X+2}, {lg+5}, v{X+3}")
        A(f"v_lshlrev_b32 v{X+1}, {lg}, v{X+2}")
        A(f"s_lshl_b32 {t0}, {t2}, {lg}"); A(f"s_add_u32 {t0}, {t0}, {t3}"); A(f"s_add_u32 {t0}, {t0}, {OBASE:#x}")
        A(f"s_lshl_b32 {t1}, {t2}, {lg-5}"); A(f"s_add_u32 {t1}, {t1}, {MLBASE:#x}")
        def issue(z):
            ML, G = SETS[z]
            for k in range(S // 2): A(f"buffer_load_dwordx4 {R(ML+4*k)}, v{X+1}, s[{WS}:{WS+3}], {t1} offen offset:{16*k} sc1")
            for s_ in range(S): A(f"buffer_load_dword v{G+s_}, v{X}, s[{WS}:{WS+3}], {t0} offen offset:{256*s_} sc1")
        def check(z):
            ML, G = SETS[z]
            regs = [ML + k for k in range(2 * S)] + [G + k for k in range(S)]
            A(f"v_max3_u32 v{X+4}, v{regs[0]}, v{regs[1]}, v{regs[2]}"); A(f"v_max3_u32 v{X+5}, v{regs[3]}, v{regs[4]}, v{regs[5]}")
            rest = regs[6:]; y = 0
            while rest:
                A(f"v_max3_u32 v{X+4+y}, v{X+4+y}, v{rest[0]}, v{rest[1]}"); rest = rest[2:]; y ^= 1
            A(f"v_max_u32 v{X+4}, v{X+4}, v{X+5}")
            A(f"v_cmp_eq_u32 vcc, -1, v{X+4}")
            A(f"s_cbranch_vccz {lbl}_ok{z}")
            A(f"s_add_u32 {sSP}, {sSP}, 1"); A(f"s_cmp_lt_u32 {sSP}, {spin}"); A(f"s_cbranch_scc0 {lbl}_ok{z}")
        issue(0)
        A(f"v_lshrrev_b32 v{X+8}, {lg-8}, v{vLANE}"); A(f"v_lshlrev_b32 v{X+8}, {lg}, v{X+8}")
        A(f"v_and_b32 v{X+9}, {S-1}, v{vLANE}"); A(f"v_lshl_add_u32 v{X+8}, v{X+9}, 3, v{X+8}")
        A(f"s_mov_b32 {sSP}, 0")
        A(f"s_waitcnt vmcnt({NL})")
        prepack()
        A("s_waitcnt vmcnt(0)")
        check(0)
        ML0 = SETS[0][0]
        A("s_mov_b32 s30, 0")
        for s_ in range(S):
            A(f"v_cmp_eq_u32 vcc, -1, v{ML0+2*s_}"); A("s_nop 1"); A("s_bcnt1_i32_b64 s31, vcc"); A("s_add_u32 s30, s30, s31")
        A(f"s_cmp_le_u32 s30, {32*KM}"); A(f"s_cbranch_scc1 {lbl}_p1ok")
        A(f"s_mov_b64 exec, {(1 << (2*S)) - 1:#x}")
        A(f"{lbl}_p1:")
        A(f"s_sleep {slp1}")
        A(f"buffer_load_dword v{X+9}, v{X+8}, s[{WS}:{WS+3}], {t1} offen sc1")
        A("s_waitcnt vmcnt(0)")
        A(f"v_cmp_eq_u32 vcc, -1, v{X+9}")
        A(f"s_add_u32 {sSP}, {sSP}, 1"); A("s_nop 0")
        A(f"s_bcnt1_i32_b64 s30, vcc")
        A(f"s_cmp_lt_u32 {sSP}, {spin}"); A(f"s_cbranch_scc0 {lbl}_p1x")
        A(f"s_cmp_le_u32 s30, {KM}"); A(f"s_cbranch_scc0 {lbl}_p1")
        A(f"{lbl}_p1x:")
        A("s_mov_b64 exec, -1")
        A(f"{lbl}_p1ok:")
        issue(0)
        if pipe:
            A(f"s_sleep {dslp}")
            A(f"{lbl}_poll:")
            issue(1)
            A(f"s_waitcnt vmcnt({NL})")
            check(0)
            issue(0)
            A(f"s_waitcnt vmcnt({NL})")
            check(1)
            A(f"s_branch {lbl}_poll")
        else:
            A(f"{lbl}_poll:")
            A("s_waitcnt vmcnt(0)")
            check(0)
            issue(0)
            A(f"s_branch {lbl}_poll")
        for z in ((0, 1) if pipe else (0,)):
            ML, G = SETS[z]
            T_ = vRING
            A(f"{lbl}_ok{z}:")
            stamp(6)
            Mx = X + 4
            A(f"v_max3_f32 v{Mx}, v{ML}, v{ML+2}, v{ML+4}"); A(f"v_max_f32 v{Mx}, v{Mx}, v{ML+6}")
            if S == 8:
                A(f"v_max3_f32 v{Mx}, v{Mx}, v{ML+8}, v{ML+10}"); A(f"v_max3_f32 v{Mx}, v{Mx}, v{ML+12}, v{ML+14}")
            for s_ in range(S): A(f"v_sub_f32 v{ML+2*s_}, v{ML+2*s_}, v{Mx}")
            for s_ in range(S): A(f"v_exp_f32 v{ML+2*s_}, v{ML+2*s_}")
            for s_ in range(S): A(f"v_lshlrev_b32 v{T_+s_}, 16, v{G+s_}")
            for s_ in range(S): A(f"v_and_b32 v{G+s_}, 0xffff0000, v{G+s_}")
            A(f"v_mul_f32 v{X+5}, v{ML}, v{ML+1}"); A(f"v_mul_f32 v{X+6}, v{ML}, v{T_}"); A(f"v_mul_f32 v{X+7}, v{ML}, v{G}")
            for s_ in range(1, S):
                A(f"v_fmac_f32 v{X+5}, v{ML+2*s_}, v{ML+2*s_+1}")
                A(f"v_fmac_f32 v{X+6}, v{ML+2*s_}, v{T_+s_}"); A(f"v_fmac_f32 v{X+7}, v{ML+2*s_}, v{G+s_}")
            A("s_branch L_dot")
    gather("L_gB", 4, OB, MLB)
    gather("L_gA", 8, OA, MLA)
    A("L_dot:")
    Y = vACC
    A(f"v_rcp_f32 v{X+5}, v{X+5}")
    A(f"s_lshl_b32 {t0}, {sWAVE}, 8")
    A(f"v_lshlrev_b32 v{X}, 2, v{vLANE}"); A(f"v_add_u32 v{X}, {t0}, v{X}")
    A(f"v_mul_f32 v{X+6}, v{X+6}, v{X+5}"); A(f"v_mul_f32 v{X+7}, v{X+7}, v{X+5}")
    A(f"v_lshrrev_b32 v{X+1}, 3, v{vLANE}"); A(f"v_lshlrev_b32 v{X+1}, 4, v{X+1}"); A(f"v_add_u32 v{X+1}, {t0}, v{X+1}")
    A(f"v_cvt_pk_bf16_f32 v{X+6}, v{X+6}, v{X+7}")
    A(f"ds_write_b32 v{X}, v{X+6} offset:{L_OX}")
    for k in range(16): A(f"v_mov_b32 v{Y+k}, 0")
    A("s_waitcnt lgkmcnt(0)")
    A(f"ds_read_b128 {R(X+8)}, v{X+1} offset:{L_OX}")
    A(f"ds_read_b128 {R(X+12)}, v{X+1} offset:{L_OX+128}")
    A("s_waitcnt lgkmcnt(1)")
    for b in range(2):
        if b: A("s_waitcnt lgkmcnt(0)")
        for p in range(4):
            for k in range(8):
                A(f"v_dot2c_f32_bf16 v{Y+8*b+k}, v{X+8+4*b+p}, v{WX[(p,k)]}")
    A("s_nop 2")
    for k in range(16): A(f"v_add_f32_dpp v{Y+k}, v{Y+k}, v{Y+k} row_ror:8 {DPP}")
    for k in range(8): A(f"v_permlane32_swap_b32 v{Y+k}, v{Y+k+8}")
    for k in range(8): A(f"v_add_f32 v{Y+k}, v{Y+k}, v{Y+k+8}")
    for k in range(4): A(f"v_permlane16_swap_b32 v{Y+k}, v{Y+k+4}")
    for k in range(4): A(f"v_add_f32 v{Y+k}, v{Y+k}, v{Y+k+4}")
    A(f"v_lshrrev_b32 v{X}, 5, v{vLANE}"); A(f"v_lshlrev_b32 v{X}, 8, v{X}")
    A(f"v_and_b32 v{X+1}, 7, v{vLANE}"); A(f"v_lshl_add_u32 v{X}, v{X+1}, 5, v{X}")
    A(f"v_and_b32 v{X+1}, 16, v{vLANE}"); A(f"v_add_u32 v{X}, v{X}, v{X+1}")
    A(f"s_lshl_b32 {t0}, {sWAVE}, 9"); A(f"v_add_u32 v{X}, {t0}, v{X}")
    A("s_mov_b32 exec_lo, 0x00ff00ff"); A("s_mov_b32 exec_hi, 0x00ff00ff")
    A(f"ds_write_b128 v{X}, {R(Y)} offset:{L_RL}")
    A("s_mov_b64 exec, -1")
    A("s_waitcnt lgkmcnt(0)")
    A("s_barrier")
    A(f"s_cmp_eq_u32 {sWAVE}, 0"); A("s_cbranch_scc0 L_fin")
    A(f"v_lshlrev_b32 v{X}, 3, v{vLANE}")
    for w in range(8): A(f"ds_read_b64 {R(Y+2*w,2)}, v{X} offset:{L_RL+512*w}")
    A(f"s_lshl_b32 {t1}, {sLC}, 12"); A(f"s_add_u32 {t1}, {t1}, {YP:#x}")
    A(f"s_lshl_b32 {t0}, {sKQ}, 9"); A(f"s_add_u32 {t0}, {t0}, {t1}")
    A("s_waitcnt lgkmcnt(0)")
    for k in range(8): A(f"v_add_f32 v{Y+k}, v{Y+k}, v{Y+k+8}")
    for k in range(4): A(f"v_add_f32 v{Y+k}, v{Y+k}, v{Y+k+4}")
    for k in range(2): A(f"v_add_f32 v{Y+k}, v{Y+k}, v{Y+k+2}")
    A(f"v_min_u32 v{Y}, -2, v{Y}"); A(f"v_min_u32 v{Y+1}, -2, v{Y+1}"); A("s_nop 1")
    A(f"v_mov_b32_dpp v{Y+2}, v{Y} quad_perm:[1,1,3,3] {DPP}"); A(f"v_mov_b32_dpp v{Y+3}, v{Y+1} quad_perm:[1,1,3,3] {DPP}")
    A("s_mov_b32 exec_lo, 0x55555555"); A("s_mov_b32 exec_hi, 0x55555555")
    A(f"buffer_store_dwordx4 {R(Y)}, v{X}, s[{WS}:{WS+3}], {t0} offen sc1")
    A("s_mov_b64 exec, -1")
    stamp(7)
    A(f"s_cmp_eq_u32 {sKQ}, 0"); A("s_cbranch_scc0 L_fin")
    G = vRING
    srd(TS, 24, 2304 * 2)
    A(f"s_lshl_b32 {t0}, {sLC}, 7")
    A(f"v_lshrrev_b32 v{X+1}, 5, v{vLANE}"); A(f"v_mul_u32_u24 v{X+1}, 2304, v{X+1}")
    A(f"v_and_b32 v{X+2}, 31, v{vLANE}"); A(f"v_lshl_add_u32 v{X+1}, v{X+2}, 2, v{X+1}")
    A(f"s_mov_b32 {sSP}, 0")
    def yissue(z):
        for k in range(8): A(f"buffer_load_dwordx2 {R(G+16*z+2*k,2)}, v{X}, s[{WS}:{WS+3}], {t1} offen offset:{512*k} sc1")
    def ycheck(z):
        g = G + 16 * z
        A(f"v_max3_u32 v{X+4}, v{g}, v{g+1}, v{g+2}"); A(f"v_max3_u32 v{X+5}, v{g+3}, v{g+4}, v{g+5}")
        for k in range(5): A(f"v_max3_u32 v{X+4+(k&1)}, v{X+4+(k&1)}, v{g+6+2*k}, v{g+7+2*k}")
        A(f"v_max_u32 v{X+4}, v{X+4}, v{X+5}")
        A(f"v_cmp_eq_u32 vcc, -1, v{X+4}")
        A(f"s_cbranch_vccz L_yok{z}")
        A(f"s_add_u32 {sSP}, {sSP}, 1"); A(f"s_cmp_lt_u32 {sSP}, {spin}"); A(f"s_cbranch_scc0 L_yok{z}")
    yissue(0)
    if pipe:
        A(f"s_sleep {dslp}")
        A("L_ypoll:")
        yissue(1); A("s_waitcnt vmcnt(8)"); ycheck(0)
        yissue(0); A("s_waitcnt vmcnt(8)"); ycheck(1)
        A("s_branch L_ypoll")
    else:
        A("L_ypoll:")
        A("s_waitcnt vmcnt(0)"); ycheck(0); yissue(0)
        A("s_branch L_ypoll")
    for z in ((1, 0) if pipe else (0,)):
        g = G + 16 * z
        A(f"L_yok{z}:")
        for k in range(8): A(f"v_add_f32 v{g+k}, v{g+k}, v{g+k+8}")
        for k in range(4): A(f"v_add_f32 v{g+k}, v{g+k}, v{g+k+4}")
        for k in range(2): A(f"v_add_f32 v{g+k}, v{g+k}, v{g+k+2}")
        A(f"v_cvt_pk_bf16_f32 v{X+4}, v{g}, v{g+1}")
        A(f"buffer_store_dword v{X+4}, v{X+1}, s[{TS}:{TS+3}], {t0} offen")
        if z: A("s_branch L_fin")
    A("L_fin:")
    if not stamps: A("s_waitcnt vmcnt(0)")
    if stamps:
        stamp(8)
        A("s_getreg_b32 s30, hwreg(HW_REG_XCC_ID)")
        A("s_waitcnt vmcnt(0) lgkmcnt(0)")
        for k in range(NST): A(f"v_mov_b32 v{vRING+k}, s{84+2*k}")
        for k in range(NST, 15): A(f"v_mov_b32 v{vRING+k}, 0")
        A(f"v_mov_b32 v{vRING+15}, s30")
        A(f"s_lshl_b32 {t0}, s2, 3"); A(f"s_add_u32 {t0}, {t0}, {sWAVE}"); A(f"s_lshl_b32 {t0}, {t0}, 6"); A(f"s_add_u32 {t0}, {t0}, {STAMP:#x}")
        A("s_mov_b64 exec, 1")
        for k in range(4): A(f"buffer_store_dwordx4 {R(vRING+4*k)}, v{vZ}, s[{WS}:{WS+3}], {t0} offen offset:{16*k}")
    if trace:
        A("s_mov_b64 exec, -1")
        A(f"s_lshl_b32 {t0}, s2, 3"); A(f"s_add_u32 {t0}, {t0}, {sWAVE}"); A(f"s_lshl_b32 {t0}, {t0}, 8"); A(f"s_add_u32 {t0}, {t0}, 0x280000")
        A(f"v_lshlrev_b32 v{vT}, 2, v{vLANE}")
        A(f"buffer_store_dword v{vTRC}, v{vT}, s[{WS}:{WS+3}], {t0} offen")
    if dbgt:
        A(f"s_cmp_eq_u32 {sWAVE}, 0"); A("s_cbranch_scc0 L_end")
        srd(TS, 26, 256)
        A("s_mov_b64 exec, 1")
        A(f"s_not_b32 s84, s84")
        for k in (0, 3, 4, 5, 8):
            A(f"v_mov_b32 v{vRING+k}, s{84+2*k}")
            A(f"buffer_atomic_umax v{vRING+k}, v{vZ}, s[{TS}:{TS+3}], 0 offen offset:{4+4*k}")
    A("L_end:")
    A("s_endpgm")
    o.append('.section .rodata,"a"'); o.append(".p2align 6"); o.append(f".amdhsa_kernel {KN}")
    o.append(f"  .amdhsa_next_free_vgpr {NV}"); o.append("  .amdhsa_next_free_sgpr 102"); o.append(f"  .amdhsa_accum_offset {(NV+3)//4*4}")
    o.append("  .amdhsa_group_segment_fixed_size 0"); o.append("  .amdhsa_kernarg_size 104"); o.append("  .amdhsa_user_sgpr_count 2")
    o.append("  .amdhsa_user_sgpr_kernarg_segment_ptr 1"); o.append("  .amdhsa_system_sgpr_workgroup_id_x 1"); o.append(".end_amdhsa_kernel")
    open(fn, "w").write("\n".join(o) + "\n")

if __name__ == "__main__":
    E = "exp/"
    M6 = (13,16,17,18,12,14,15)
    T = dict(first=4, pipe=False)
    gen(E + "k7_m1x.s", mapping=1, sord=M6, **T)
    gen(E + "k7_m0x.s", mapping=0, sord=M6, **T)
    gen(E + "k7_m1x2.s", mapping=1, sord=M6, NPF=2, **T)
    gen(E + "k7_m1xp.s", mapping=1, sord=M6, first=4, pipe=True, dslp=4)
    gen(E + "k7_m1xn.s", mapping=1, sord=M6, warm=0, **T)
    gen(E + "k7_m1xt.s", mapping=1, sord=M6, TH0=90, **T)
```

```python
import struct, sys
KN = "concat_heads__sliding_block_cached__mha_block_cached__decode_kernel"
HDR = open("concat_heads__sliding_block_cached__mha_block_cached__decode.s.ref").read().split("; Override launch")[0]

def f32(x): return struct.unpack("<I", struct.pack("<f", x))[0]
CSC = f32(128 ** -0.5 * 1.4426950408889634)
NEG = f32(-3.0e38)

FL = 0x8000
EPOCH, QG, TC, OB, MLB, OA, MLA, YP, WSN = 0, 0x10000, 0x20000, 0x30000, 0x40000, 0x50000, 0x70000, 0x80000, 0x200000
STAMP = 0x200000
QP = 0x100000
QPB = 0x180000
L_EV = 12
L_QF = 16
L_QB = 0x4C00
L_TK, L_DB, L_DA, L_ML, L_Q, L_ST, L_RL, L_OX, L_QL, L_END = 0, 4, 8, 0x100, 0x200, 0x400, 0x3400, 0x4400, 0x4C00, 0x4D00
DPP = "row_mask:0xf bank_mask:0xf"

def gen(fn, TH0=60, sord=(13,16,17,18,12,14,15), stamps=False, spin=200000, wo_nt="nt", wq_nt="nt", cx=(3, 5), slp=1, KM=3, slp1=2, kpol="nt", vpol="nt", dbgt=False, trace=False, warm=0, NPF=3, prio=True, mapping=1, first=4, nif=8, late=True, qslp=16, pipe=False, dslp=2, pm=0, abar=False, qdel=0):
    W, J = 8, 4
    NB, NA = 128, 128
    o = []
    def A(s): o.append("    " + s if not s.endswith(":") else s)
    sWAVE = "s3"
    PK, PV, WS, TS = 32, 36, 40, 44
    sBB, sAB, sOFF, sPK, sPT, sBD, sNK, sTAG, sTH, sC = "s48", "s49", "s50", "s52", "s53", "s54", "s55", "s56", "s57", "s58"
    sX, sJ, sU = "s59", "s60", "s61"
    sCONS, sLC, sKQ, sWOFF = "s62", "s63", "s64", "s65"
    t0, t1, t2, t3 = "s66", "s67", "s68", "s69"
    sSP = "s70"; sWOFF2 = "s71"
    WO = 72
    sSEL0, sSEL1 = "s76", "s77"
    TS2 = 80
    vL16, vLANE, vTC, vZ, vONE, vAT, vTK, vWOV = 0, 1, 2, 3, 4, 5, 6, 7
    vQB = 8
    vQA = 12
    vACC = 20
    vM, vMC, vLs = 36, 38, 40
    vT = 44
    vRING = 64
    vWO = 96
    vX = 96
    vWQ = 96
    vWQB, vWQA = 64, 136
    vXDB, vXDA = 208, 218
    vWA, vWA2 = 228, 231
    vSL = 234
    vSO = 242
    vTRC = 250
    NV = 252
    sH, sBT = "s31", "s51"
    sO = ["s78", "s79", "s30", "s57"]
    def srd(d, lo, n):
        A(f"s_mov_b32 s{d}, s{lo}"); A(f"s_mov_b32 s{d+1}, s{lo+1}"); A(f"s_mov_b32 s{d+2}, {n}"); A(f"s_mov_b32 s{d+3}, 0x20000")
    def R(b, n=4): return f"v[{b}:{b+n-1}]"
    def stamp(k):
        if stamps: A(f"s_memrealtime s[{84+2*k}:{85+2*k}]")
    NST = 9

    o.append(HDR.rstrip())
    o.append(f"; @launch grid=(256,1,1) block=(512,1,1) lds={L_END}")
    o.append('.amdgcn_target "amdgcn-amd-amdhsa--gfx950"')
    o.append(".text"); o.append(f".globl {KN}"); o.append(".p2align 8"); o.append(f".type {KN},@function"); o.append(f"{KN}:")
    A("s_cmp_ge_u32 s2, 256"); A("s_cbranch_scc1 L_end")
    A("s_load_dwordx16 s[4:19], s[0:1], 0")
    A("s_load_dwordx8 s[20:27], s[0:1], 64")
    A("s_load_dwordx2 s[28:29], s[0:1], 96")
    if stamps:
        for k in range(1, NST): A(f"s_mov_b64 s[{84+2*k}:{85+2*k}], 0")
    stamp(0)
    A("v_lshrrev_b32 v2, 6, v0")
    A(f"v_and_b32 v{vLANE}, 63, v0")
    A(f"v_readfirstlane_b32 {sWAVE}, v2")
    A(f"v_lshlrev_b32 v{vL16}, 4, v{vLANE}")
    A(f"s_and_b32 {sX}, s2, 7"); A(f"s_lshr_b32 {sJ}, s2, 3")
    if mapping == 0:
        A(f"s_lshl_b32 {t0}, {sX}, 2"); A(f"s_lshr_b32 {t1}, {sJ}, 3"); A(f"s_add_u32 {sH}, {t0}, {t1}")
        A(f"s_bfe_u32 {sBT}, {sJ}, 0x10002")
        A(f"s_lshl_b32 {t0}, {sBT}, 7"); A(f"s_lshl_b32 {t1}, {sH}, 2"); A(f"s_add_u32 {sU}, {t0}, {t1}")
        A(f"s_and_b32 {t1}, {sJ}, 3"); A(f"s_add_u32 {sU}, {sU}, {t1}")
    else:
        A(f"s_lshl_b32 {sU}, {sX}, 5"); A(f"s_add_u32 {sU}, {sU}, {sJ}")
        A(f"s_bfe_u32 {sH}, {sU}, 0x50002"); A(f"s_lshr_b32 {sBT}, {sU}, 7")
    A(f"v_mov_b32 v{vZ}, 0")
    A(f"s_mov_b32 s{PK+2}, 134217728"); A(f"s_mov_b32 s{PK+3}, 0x20000")
    A(f"s_mov_b32 s{PV+2}, 134217728"); A(f"s_mov_b32 s{PV+3}, 0x20000")
    A(f"s_mov_b32 s{WS+2}, {WSN if not stamps else 0x300000}"); A(f"s_mov_b32 s{WS+3}, 0x20000")
    A(f"s_lshl_b32 {sBB}, {sU}, 19")
    lgs = {1: 0, 2: 1, 4: 2, 8: 3, 16: 4, 32: 5, 64: 6}.get(sord)
    def boff(dst, t):
        if isinstance(sord, tuple):
            runs = []; i = 0
            while i < 7:
                k = i
                while k + 1 < 7 and sord[k+1] == sord[k] + 1: k += 1
                runs.append((i, k - i + 1, sord[i])); i = k + 1
            src = sBB
            for n_, (lo, n, pos) in enumerate(runs):
                d_ = dst if n_ == len(runs) - 1 else t1
                A(f"s_bfe_u32 {t0}, {t}, {(n << 16) | lo:#x}"); A(f"s_lshl_b32 {t0}, {t0}, {pos}"); A(f"s_add_u32 {d_}, {src}, {t0}")
                src = t1
            return
        if sord == 1:
            A(f"s_lshl_b32 {t0}, {t}, 12"); A(f"s_add_u32 {dst}, {t0}, {sBB}"); return
        A(f"s_and_b32 {t0}, {t}, {sord-1}"); A(f"s_lshl_b32 {t0}, {t0}, {7-lgs}"); A(f"s_lshr_b32 {t1}, {t}, {lgs}"); A(f"s_add_u32 {t0}, {t0}, {t1}")
        A(f"s_lshl_b32 {t0}, {t0}, 12")
        A(f"s_add_u32 {dst}, {t0}, {sBB}")
    def ld(slot, ring=vRING, so=sOFF):
        s_ = PK if slot < J else PV
        A(f"buffer_load_dwordx4 {R(ring+4*slot)}, v{vL16}, s[{s_}:{s_+3}], {so} offen offset:{(slot % J)*1024} {kpol if slot < J else vpol}")
    def kvsrd():
        A(f"s_mov_b32 s{PK}, s16"); A(f"s_mov_b32 s{PK+1}, s17")
        A(f"s_mov_b32 s{PV}, s18"); A(f"s_mov_b32 s{PV+1}, s19")
        A(f"s_mov_b32 s{WS}, s28"); A(f"s_mov_b32 s{WS+1}, s29")
    nset = [0]
    def setup():
        n = nset[0]; nset[0] += 1
        A(f"s_mov_b32 {sCONS}, 0"); A(f"s_mov_b32 {sLC}, 0"); A(f"s_mov_b32 {sKQ}, 0")
        A(f"s_lshr_b32 {t0}, {sX}, 1"); A(f"s_lshl_b32 {t0}, {t0}, 5"); A(f"s_add_u32 {t0}, {t0}, {sJ}")
        A(f"s_bitcmp0_b32 {sX}, 0"); A(f"s_cbranch_scc1 L_cons{n}")
        A(f"s_cmp_lt_u32 {sJ}, 8"); A(f"s_cbranch_scc0 L_consd{n}")
        A(f"s_add_u32 {t0}, {sJ}, 128"); A(f"s_cmp_eq_u32 {sX}, {cx[0]}"); A(f"s_cbranch_scc1 L_cons{n}")
        A(f"s_add_u32 {t0}, {sJ}, 136"); A(f"s_cmp_eq_u32 {sX}, {cx[1]}"); A(f"s_cbranch_scc0 L_consd{n}")
        A(f"L_cons{n}:")
        A(f"s_lshr_b32 {sLC}, {t0}, 3"); A(f"s_and_b32 {sKQ}, {t0}, 7")
        A(f"s_mov_b32 {sCONS}, 1")
        A(f"s_cmp_lt_u32 {sLC}, 9"); A(f"s_cbranch_scc1 L_consd{n}")
        A(f"s_mov_b32 {sCONS}, 2")
        A(f"L_consd{n}:")
        A(f"s_lshl_b32 {t0}, {sJ}, 8"); A(f"s_add_u32 {t0}, {t0}, {TC:#x}")
        A(f"v_mov_b32 v{vTC}, {t0}"); A(f"v_mov_b32 v{vONE}, 1")
        A(f"s_lshl_b32 {sAB}, {sJ}, 21"); A(f"s_add_u32 {sAB}, {sAB}, {6144*256}")
        A(f"s_mov_b32 {sC}, {CSC:#x}")
        A(f"s_cmp_eq_u32 {sCONS}, 2")
        A(f"s_cselect_b32 s{WO}, s22, s12"); A(f"s_cselect_b32 s{WO+1}, s23, s13")
        A(f"s_cselect_b32 {t0}, 9, 0"); A(f"s_sub_u32 {t0}, {sLC}, {t0}")
        A(f"s_cmp_eq_u32 {sCONS}, 0")
        A(f"s_cselect_b32 s{WO+2}, 0, {4096*1152}"); A(f"s_mov_b32 s{WO+3}, 0x20000")
        A(f"s_lshl_b32 {t0}, {t0}, 7")
        A(f"s_mul_i32 {t1}, {sKQ}, {512*1152}"); A(f"s_add_u32 {t0}, {t0}, {t1}")
        A(f"s_mul_i32 {t1}, {sWAVE}, {64*1152}"); A(f"s_add_u32 {sWOFF}, {t0}, {t1}"); A(f"s_add_u32 {sWOFF2}, {sWOFF}, {4*1152}")
        A(f"v_lshrrev_b32 v{vWOV}, 3, v{vLANE}"); A(f"v_mul_u32_u24 v{vWOV}, {8*1152}, v{vWOV}")
        A(f"v_and_b32 v{vTK}, 7, v{vLANE}"); A(f"v_lshl_add_u32 v{vWOV}, v{vTK}, 4, v{vWOV}")
        A(f"s_mov_b32 {sSEL0}, 0x05040100"); A(f"s_mov_b32 {sSEL1}, 0x07060302")
        A(f"s_mov_b32 {sPK}, 0"); A(f"s_mov_b32 {sBD}, 0")
    def init_state():
        for k in range(16): A(f"v_mov_b32 v{vACC+k}, 0")
        for e in range(2):
            A(f"v_mov_b32 v{vM+e}, {NEG:#x}"); A(f"v_mul_f32 v{vMC+e}, {sC}, v{vM+e}"); A(f"v_mov_b32 v{vLs+e}, 0")
    A(f"s_cmp_eq_u32 {sWAVE}, 0"); A("s_cbranch_scc1 L_w0")
    A(f"s_sub_u32 {t2}, {sWAVE}, 1")
    for k in range(NPF + 1):
        boff(sO[k], t2); A(f"s_add_u32 {t2}, {t2}, 7")
    A(f"s_mov_b32 {sPT}, {t2}")
    A("s_waitcnt lgkmcnt(0)")
    kvsrd()
    PF = [(s_, vX + 32 * k, sO[k]) for k in range(NPF) for s_ in range(8)] + [(s_, vRING, sO[NPF]) for s_ in range(8)]
    for a_ in PF[:first]: ld(*a_)
    A("s_barrier")
    for i_, a_ in enumerate(PF):
        if i_ < first: continue
        if i_ >= nif: A(f"s_waitcnt vmcnt({nif-1})")
        ld(*a_)
    stamp(1)
    setup()
    init_state()
    A(f"s_mov_b32 {sSP}, 0")
    A("L_qfw:")
    A(f"ds_read_b64 {R(vT,2)}, v{vZ} offset:{L_QF}")
    A("s_waitcnt lgkmcnt(0)")
    A(f"v_readfirstlane_b32 {t0}, v{vT}"); A(f"v_readfirstlane_b32 {sTAG}, v{vT+1}")
    A("s_nop 3")
    A(f"s_cmp_eq_u32 {t0}, 1"); A("s_cbranch_scc1 L_qfok")
    A(f"s_add_u32 {sSP}, {sSP}, 1"); A(f"s_cmp_lt_u32 {sSP}, {8*spin}"); A("s_cbranch_scc0 L_qfok")
    A("s_sleep 2")
    A("s_branch L_qfw")
    A("L_qfok:")
    A(f"v_and_b32 v{vT}, 0xf0, v{vL16}")
    A(f"ds_read_b128 {R(vQB)}, v{vT} offset:{L_QB}")
    A("s_waitcnt lgkmcnt(0)")
    stamp(3)
    A("s_branch L_peel")
    A("L_w0:")
    if prio: A("s_setprio 3")
    A(f"s_and_b32 {t2}, {sU}, 3"); A(f"s_lshl_b32 {t3}, {sBT}, 2"); A(f"s_add_u32 {t3}, {t3}, {t2}")
    A(f"v_lshrrev_b32 v{vT}, 4, v{vLANE}")
    A(f"v_mul_u32_u24 v{vWA}, {18*8192}, v{vT}")
    A(f"v_and_b32 v{vT+1}, 0xf0, v{vL16}")
    A(f"s_mul_i32 {t0}, {t3}, {72*8192}"); A(f"s_lshl_b32 {t1}, {sH}, 8"); A(f"s_add_u32 {t0}, {t0}, {t1}")
    A(f"v_add3_u32 v{vWA}, v{vWA}, v{vT+1}, {t0}")
    A(f"v_add_u32 v{vWA+1}, 0x2000, v{vWA}")
    A(f"v_bfe_u32 v{vT+1}, v{vLANE}, 3, 1"); A(f"v_mul_u32_u24 v{vT+1}, 1152, v{vT+1}")
    A(f"v_mul_u32_u24 v{vWA+2}, 36, v{vT}")
    A(f"s_mul_i32 {t0}, {t3}, 144")
    A(f"v_add3_u32 v{vWA+2}, v{vWA+2}, v{vT+1}, {t0}")
    A(f"s_sub_u32 {t0}, {sJ}, {sH}"); A(f"s_lshl_b32 {t0}, {t0}, 8")
    A(f"s_sub_u32 {t1}, {sX}, {t3}"); A(f"s_mul_i32 {t2}, {t1}, {72*8192}"); A(f"s_add_u32 {t0}, {t0}, {t2}")
    A(f"s_mul_i32 {t1}, {t1}, 144")
    A(f"v_add_u32 v{vWA2}, {t0}, v{vWA}"); A(f"v_add_u32 v{vWA2+1}, {t0}, v{vWA+1}"); A(f"v_add_u32 v{vWA2+2}, {t1}, v{vWA+2}")
    A(f"s_mov_b32 s{TS2+2}, {576*8192}"); A(f"s_mov_b32 s{TS2+3}, 0x20000")
    A(f"s_mov_b32 s{TS+2}, 2304"); A(f"s_mov_b32 s{TS+3}, 0x20000")
    A(f"v_mov_b32 v{vT+4}, {7*(NPF+2)+2}"); A(f"v_mov_b32 v{vT+5}, 0"); A(f"v_mov_b32 v{vT+6}, 0"); A(f"v_mov_b32 v{vT+7}, 0")
    A("s_mov_b64 exec, 1")
    A(f"ds_write_b128 v{vZ}, {R(vT+4)}")
    A(f"ds_write_b32 v{vZ}, v{vZ} offset:{L_QF}")
    A("s_mov_b64 exec, -1")
    A("s_waitcnt lgkmcnt(0)")
    A(f"s_mov_b32 s{TS2}, s20"); A(f"s_mov_b32 s{TS2+1}, s21")
    A(f"s_mov_b32 s{TS}, s14"); A(f"s_mov_b32 s{TS+1}, s15")
    Q = []
    def wt(tag):
        A(f"s_waitcnt vmcnt({min(63, len(Q) - 1 - Q.index(tag))})")
    def qloads(m, xd, wq_, wa):
        A(f"buffer_load_dwordx4 {R(xd)}, v{wa+2}, s[{TS}:{TS+3}], 0 offen")
        A(f"buffer_load_dwordx4 {R(xd+4)}, v{wa+2}, s[{TS}:{TS+3}], 0 offen offset:16")
        A(f"buffer_load_dword v{xd+8}, v{wa+2}, s[{TS}:{TS+3}], 0 offen offset:32")
        Q.extend([(m, "x0"), (m, "x1"), (m, "x")])
        for jj in range(9):
            A(f"s_mov_b32 {t0}, {jj*16384}")
            A(f"buffer_load_dwordx4 {R(wq_+8*jj)}, v{wa}, s[{TS2}:{TS2+3}], {t0} offen {wq_nt}")
            A(f"buffer_load_dwordx4 {R(wq_+8*jj+4)}, v{wa+1}, s[{TS2}:{TS2+3}], {t0} offen {wq_nt}")
            Q.extend([(m, "w0", jj), (m, "w1", jj)])
    def qmfma(m, xd, wq_):
        for k in range(4): A(f"v_mov_b32 v{vACC+k}, 0")
        wt((m, "x"))
        for jj in range(9):
            for e in range(2):
                for d in range(4): A(f"v_perm_b32 v{vSO+4*e+d}, v{xd+jj}, v{xd+jj}, v{vSL+4*e+d}")
            wt((m, "w0", jj))
            A(f"v_mfma_f32_16x16x32_bf16 {R(vACC)}, {R(vSO)}, {R(wq_+8*jj)}, {R(vACC)}")
            wt((m, "w1", jj))
            A(f"v_mfma_f32_16x16x32_bf16 {R(vACC)}, {R(vSO+4)}, {R(wq_+8*jj+4)}, {R(vACC)}")
        A("s_nop 7")
    def qpub(so):
        for k in range(4): A(f"v_mov_b32 v{vT+8+2*k}, v{vACC+k}")
        A(f"buffer_store_dwordx4 {R(vT+8)}, v{vT+3}, s[{WS}:{WS+3}], {so} offen sc1")
        A(f"buffer_store_dwordx4 {R(vT+12)}, v{vT+3}, s[{WS}:{WS+3}], {so} offen offset:512 sc1")
        Q.extend(["p0", "p1"])
    qloads("B", vXDB, vWQB, vWA)
    kvsrd()
    A(f"buffer_load_dword v{vT+2}, v{vZ}, s[{WS}:{WS+3}], 0 offen sc1")
    Q.append("ep")
    if not abar: A("s_barrier")
    A(f"s_mov_b32 s{TS2}, s10"); A(f"s_mov_b32 s{TS2+1}, s11")
    A(f"s_mov_b32 s{TS}, s4"); A(f"s_mov_b32 s{TS+1}, s5")
    qloads("A", vXDA, vWQA, vWA2)
    if abar: A("s_barrier")
    A(f"v_and_b32 v{vT+4}, 1, v{vLANE}"); A(f"v_cmp_eq_u32 vcc, 1, v{vT+4}")
    A(f"v_mov_b32 v{vT+5}, 0x01000c0c"); A(f"v_mov_b32 v{vT+6}, 0x03020c0c")
    A(f"v_mov_b32 v{vT+11}, 0x0c0c0100"); A(f"v_mov_b32 v{vT+12}, 0x0c0c0302"); A(f"v_mov_b32 v{vT+7}, 0x0c0c0c0c")
    A(f"v_cndmask_b32 v{vT+5}, v{vT+11}, v{vT+5}, vcc"); A(f"v_cndmask_b32 v{vT+6}, v{vT+12}, v{vT+6}, vcc")
    A(f"v_bfe_u32 v{vT+4}, v{vLANE}, 1, 2")
    for d in range(4):
        A(f"v_cmp_eq_u32 vcc, {d}, v{vT+4}"); A("s_nop 1")
        A(f"v_cndmask_b32 v{vSL+d}, v{vT+7}, v{vT+5}, vcc"); A(f"v_cndmask_b32 v{vSL+4+d}, v{vT+7}, v{vT+6}, vcc")
    A(f"v_lshrrev_b32 v{vT+3}, 5, v{vLANE}"); A(f"v_lshlrev_b32 v{vT+3}, 13, v{vT+3}")
    A(f"v_and_b32 v{vT+5}, 15, v{vLANE}"); A(f"v_lshl_add_u32 v{vT+3}, v{vT+5}, 5, v{vT+3}")
    A(f"v_and_b32 v{vT+5}, 16, v{vLANE}"); A(f"v_add_u32 v{vT+3}, v{vT+3}, v{vT+5}")
    A(f"s_lshl_b32 {t0}, {sH}, 14"); A(f"s_add_u32 {t0}, {t0}, {QPB:#x}"); A(f"s_lshl_b32 {t1}, {t3}, 10"); A(f"s_add_u32 {sO[0]}, {t0}, {t1}")
    A(f"s_lshl_b32 {t1}, {sBT}, 13"); A(f"s_add_u32 {sO[2]}, {t0}, {t1}"); A(f"s_add_u32 {sO[3]}, {sO[2]}, 4096")
    A(f"s_lshl_b32 {t0}, {sJ}, 14"); A(f"s_lshl_b32 {t1}, {sX}, 10"); A(f"s_add_u32 {t0}, {t0}, {t1}"); A(f"s_add_u32 {sO[1]}, {t0}, {QP:#x}")
    setup()
    A(f"s_lshl_b32 {t0}, {sU}, 8"); A(f"s_add_u32 {t0}, {t0}, {OB:#x}")
    A(f"s_lshl_b32 {t1}, {sJ}, 4"); A(f"s_add_u32 {t1}, {t1}, {sX}")
    A(f"s_lshl_b32 {t2}, {t1}, 8"); A(f"s_add_u32 {t2}, {t2}, {OA - 2048:#x}")
    A(f"v_lshlrev_b32 v{vT+5}, 11, v{vT}"); A(f"v_add_u32 v{vT+5}, {t2}, v{vT+5}")
    A(f"v_mov_b32 v{vT+6}, {t0}")
    A(f"v_cmp_eq_u32 vcc, 0, v{vT}"); A("s_nop 1")
    A(f"v_cndmask_b32 v{vT+5}, v{vT+5}, v{vT+6}, vcc")
    A(f"v_and_b32 v{vT+6}, 0xf0, v{vL16}"); A(f"v_add_u32 v{vQA}, v{vT+5}, v{vT+6}")
    for k in range(4): A(f"v_mov_b32 v{vQA+4+k}, -1")
    A(f"s_lshl_b32 {t0}, {sU}, 3"); A(f"s_add_u32 {t0}, {t0}, {MLB:#x}")
    A(f"s_lshl_b32 {t2}, {t1}, 3"); A(f"s_add_u32 {t2}, {t2}, {MLA - 64:#x}")
    A(f"v_lshlrev_b32 v{vT+5}, 6, v{vLANE}"); A(f"v_add_u32 v{vT+5}, {t2}, v{vT+5}")
    A(f"v_mov_b32 v{vT+6}, {t0}")
    A(f"v_cmp_eq_u32 vcc, 0, v{vLANE}"); A("s_nop 1")
    A(f"v_cndmask_b32 v{vQA+1}, v{vT+5}, v{vT+6}, vcc")
    A(f"s_lshl_b32 {t3}, {sLC}, 3"); A(f"s_add_u32 {t3}, {t3}, {sKQ}"); A(f"s_lshl_b32 {t3}, {t3}, 9"); A(f"s_add_u32 {t3}, {t3}, {YP:#x}")
    qmfma("B", vXDB, vWQB)
    wt("ep")
    A(f"v_readfirstlane_b32 {t0}, v{vT+2}")
    A("s_nop 3")
    A(f"s_mul_i32 {sTAG}, {t0}, 0x9E3779B1"); A(f"s_add_u32 {sTAG}, {sTAG}, 0x7F4A7C15")
    for k in range(4): A(f"v_mov_b32 v{vT+9+2*k}, {sTAG}")
    qpub(sO[0])
    stamp(1)
    qmfma("A", vXDA, vWQA)
    qpub(sO[1])
    stamp(2)
    A("s_mov_b64 exec, 1")
    A(f"s_cmp_eq_u32 {sX}, 0"); A("s_cbranch_scc0 L_notc")
    A(f"buffer_store_dword v{vZ}, v{vTC}, s[{WS}:{WS+3}], 0 offen sc1")
    A("L_notc:")
    A("s_mov_b64 exec, 7")
    A(f"buffer_store_dwordx2 {R(vQA+4,2)}, v{vQA+1}, s[{WS}:{WS+3}], 0 offen sc1")
    A("s_mov_b32 exec_lo, -1"); A("s_mov_b32 exec_hi, 0xffff")
    A(f"buffer_store_dwordx4 {R(vQA+4)}, v{vQA}, s[{WS}:{WS+3}], 0 offen sc1")
    A("s_mov_b32 exec_hi, 0")
    A(f"s_cmp_eq_u32 {sCONS}, 0"); A("s_cbranch_scc1 L_noyc")
    A(f"buffer_store_dwordx4 {R(vQA+4)}, v{vL16}, s[{WS}:{WS+3}], {t3} offen sc1")
    A("L_noyc:")
    A("s_mov_b64 exec, -1")
    G = vX
    def poll1(k):
        A(f"buffer_load_dwordx4 {R(G+4*k)}, v{vL16}, s[{WS}:{WS+3}], {sO[2+(k>>2)]} offen offset:{(k&3)*1024} sc1")
    if qdel: A(f"s_sleep {qdel}")
    for k in range(8): poll1(k)
    A(f"s_mov_b32 {t2}, {7*(NPF+2)}"); boff(sOFF, t2); A(f"s_mov_b32 {sPT}, {7*(NPF+2)+1}")
    for s_ in range(8): ld(s_)
    A(f"s_mov_b32 {sSP}, 0")
    A("s_waitcnt vmcnt(8)")
    A("L_qpoll:")
    A(f"s_mov_b32 {t2}, 0")
    for k in range(8):
        A(f"v_xor_b32 v{vT+4}, {sTAG}, v{G+4*k+1}"); A(f"v_xor_b32 v{vT+5}, {sTAG}, v{G+4*k+3}"); A(f"v_or_b32 v{vT+4}, v{vT+4}, v{vT+5}")
        A(f"v_cmp_ne_u32 vcc, 0, v{vT+4}")
        A(f"s_cbranch_vccz L_qs{k}")
        poll1(k)
        A(f"s_mov_b32 {t2}, 1")
        A(f"L_qs{k}:")
    A(f"s_cmp_eq_u32 {t2}, 0"); A("s_cbranch_scc1 L_qok")
    A("s_waitcnt vmcnt(0)")
    A(f"s_add_u32 {sSP}, {sSP}, 1"); A(f"s_cmp_lt_u32 {sSP}, {spin}"); A("s_cbranch_scc1 L_qpoll")
    A("L_qok:")
    for n in (4, 2, 1):
        for k in range(n):
            for c in (0, 2): A(f"v_add_f32 v{G+4*k+c}, v{G+4*k+c}, v{G+4*(k+n)+c}")
    A(f"v_and_b32 v{vT+4}, 31, v{vLANE}"); A(f"v_lshlrev_b32 v{vT+4}, 3, v{vT+4}")
    A(f"v_lshrrev_b32 v{vT+5}, 5, v{vLANE}"); A(f"v_lshl_add_u32 v{vT+4}, v{vT+5}, 2, v{vT+4}")
    A(f"v_cvt_pk_bf16_f32 v{vT+5}, v{G}, v{G+2}")
    A(f"v_mov_b32 v{vT+6}, 1"); A(f"v_mov_b32 v{vT+7}, {sTAG}")
    A(f"ds_write_b32 v{vT+4}, v{vT+5} offset:{L_QB}")
    A("s_mov_b64 exec, 1")
    A(f"ds_write_b64 v{vZ}, {R(vT+6,2)} offset:{L_QF}")
    stamp(3)
    A(f"s_lshl_b32 {t0}, s2, 2"); A(f"s_add_u32 {t0}, {t0}, {FL:#x}")
    A(f"buffer_store_dword v{vT+7}, v{vZ}, s[{WS}:{WS+3}], {t0} offen sc1")
    A("s_mov_b64 exec, -1")
    if prio: A(f"s_setprio {1 if pm else 0}")
    if pm == 3: A(f"s_mov_b32 {sTH}, 0")
    A(f"v_and_b32 v{vT+4}, 0xf0, v{vL16}")
    A(f"ds_read_b128 {R(vQB)}, v{vT+4} offset:{L_QB}")
    init_state()
    A("s_waitcnt lgkmcnt(0)")
    if trace:
        A("s_mov_b32 m0, 0"); A(f"v_mov_b32 v{vTRC}, 0")
    A("s_branch L_B")

    def event():
        G = vWQ
        A("s_mov_b64 exec, -1")
        A(f"s_and_b32 {t0}, {sJ}, 15"); A(f"s_lshl_b32 {t0}, {t0}, 15"); A(f"s_lshr_b32 {t1}, {sJ}, 4"); A(f"s_lshl_b32 {t1}, {t1}, 13")
        A(f"s_add_u32 {t0}, {t0}, {t1}"); A(f"s_add_u32 {t0}, {t0}, {QP:#x}")
        A(f"s_add_u32 {t1}, {t0}, 4096"); A(f"s_add_u32 {t2}, {t0}, 16384"); A(f"s_add_u32 {t3}, {t0}, 20480")
        A(f"v_add_u32 v{vT}, {FL:#x}, v{vL16}")
        if warm:
            A("s_mov_b64 exec, 1")
            srd(TS, 6, 67108864); srd(TS2, 8, 67108864)
            A(f"buffer_load_dword v{vT+4}, v{vZ}, s[{TS}:{TS+3}], {sAB} offen nt")
            A(f"buffer_load_dword v{vT+5}, v{vZ}, s[{TS2}:{TS2+3}], {sAB} offen nt")
            A(f"s_mul_i32 {sSP}, {sWAVE}, {64*1152}"); A(f"s_sub_u32 {sSP}, {sWOFF}, {sSP}")
            A(f"buffer_load_dword v{vT+6}, v{vZ}, s[{WO}:{WO+3}], {sSP} offen nt")
            A(f"s_add_u32 {sSP}, {sSP}, {511*1152}")
            A(f"buffer_load_dword v{vT+7}, v{vZ}, s[{WO}:{WO+3}], {sSP} offen nt")
            srd(TS, 24, 2304 * 2)
            A(f"buffer_load_dword v{vT+8}, v{vZ}, s[{TS}:{TS+3}], 0 offen")
            A("s_mov_b64 exec, -1")
        A(f"s_mov_b32 {sSP}, 0")
        A("L_evpoll:")
        for k in range(16):
            A(f"buffer_load_dwordx4 {R(G+4*k)}, v{vL16}, s[{WS}:{WS+3}], {(t0,t1,t2,t3)[k>>2]} offen offset:{(k&3)*1024} sc1")
        A(f"buffer_load_dwordx4 {R(G+64)}, v{vT}, s[{WS}:{WS+3}], 0 offen sc1")
        A("s_waitcnt vmcnt(0)")
        tg = [G + 2 * k + 1 for k in range(32)] + [G + 64 + k for k in range(4)]
        for r_ in tg: A(f"v_xor_b32 v{r_}, {sTAG}, v{r_}")
        A(f"v_or3_b32 v{vT+1}, v{tg[0]}, v{tg[1]}, v{tg[2]}"); A(f"v_or3_b32 v{vT+2}, v{tg[3]}, v{tg[4]}, v{tg[5]}")
        for k in range(15): A(f"v_or3_b32 v{vT+1+(k&1)}, v{vT+1+(k&1)}, v{tg[6+2*k]}, v{tg[7+2*k]}")
        A(f"v_or_b32 v{vT+1}, v{vT+1}, v{vT+2}")
        A(f"v_cmp_ne_u32 vcc, 0, v{vT+1}")
        A("s_cbranch_vccz L_evok")
        A(f"s_add_u32 {sSP}, {sSP}, 1"); A(f"s_cmp_lt_u32 {sSP}, {spin}"); A("s_cbranch_scc0 L_evok")
        A("s_sleep 8")
        A("s_branch L_evpoll")
        A("L_evok:")
        for n in (4, 2, 1):
            for e in range(2):
                for k in range(n):
                    for c in (0, 2):
                        A(f"v_add_f32 v{G+32*e+4*k+c}, v{G+32*e+4*k+c}, v{G+32*e+4*(k+n)+c}")
        A(f"v_and_b32 v{vT}, 31, v{vLANE}"); A(f"v_lshlrev_b32 v{vT}, 3, v{vT}")
        A(f"v_lshrrev_b32 v{vT+1}, 5, v{vLANE}"); A(f"v_lshl_add_u32 v{vT}, v{vT+1}, 2, v{vT}")
        A(f"v_cvt_pk_bf16_f32 v{vT+2}, v{G}, v{G+2}"); A(f"v_cvt_pk_bf16_f32 v{vT+3}, v{G+32}, v{G+34}")
        A(f"ds_write2st64_b32 v{vT}, v{vT+2}, v{vT+3} offset0:{L_Q//256} offset1:{L_Q//256+1}")
        A("s_mov_b64 exec, 1")
        A("s_waitcnt lgkmcnt(0)")
        A(f"ds_write_b32 v{vZ}, v{vONE} offset:{L_EV}")
        A(f"s_cmp_eq_u32 s2, 0"); A("s_cbranch_scc0 L_ev_noep")
        A(f"v_mov_b32 v{vT+1}, {sTAG}")
        A(f"buffer_store_dword v{vT+1}, v{vZ}, s[{WS}:{WS+3}], 0 offen sc1")
        A("L_ev_noep:")

    def getqa():
        A(f"s_mov_b32 {sSP}, 0")
        A("L_qaw:")
        A(f"ds_read_b32 v{vTK}, v{vZ} offset:{L_EV}")
        A("s_waitcnt lgkmcnt(0)")
        A(f"v_readfirstlane_b32 {t0}, v{vTK}")
        A("s_nop 3")
        A(f"s_cmp_eq_u32 {t0}, 1"); A("s_cbranch_scc1 L_qaok")
        A(f"s_add_u32 {sSP}, {sSP}, 1"); A(f"s_cmp_lt_u32 {sSP}, {4*spin}"); A("s_cbranch_scc0 L_qaok")
        A("s_sleep 8")
        A("s_branch L_qaw")
        A("L_qaok:")
        A("s_mov_b64 exec, -1")
        A(f"v_and_b32 v{vT}, 0xf0, v{vL16}")
        A(f"ds_read_b128 {R(vQA)}, v{vT} offset:{L_Q}")
        A(f"ds_read_b128 {R(vQA+4)}, v{vT} offset:{L_Q+256}")
        A("s_waitcnt lgkmcnt(0)")
        A("s_mov_b64 exec, 1")

    def wold(i):
        so = sWOFF if i < 4 else sWOFF2
        A(f"buffer_load_dwordx4 {R(vWO+4*i)}, v{vWOV}, s[{WO}:{WO+3}], {so} offen offset:{(i%4)*1152} {wo_nt}")

    def compute(isA, ring, reload, waits):
        NH = 2 if isA else 1
        S = lambda e, j: vT + e * 4 + j
        PL = lambda e, j: vT + 8 + e * 4 + j
        X = vT + 16
        for j in range(J):
            waits(j)
            k = ring + 4 * j
            for e in range(NH): A(f"v_mov_b32 v{S(e,j)}, 0")
            for d in range(4):
                for e in range(NH):
                    q = (vQA + 4 * e) if isA else vQB
                    A(f"v_dot2c_f32_bf16 v{S(e,j)}, v{k+d}, v{q+d}")
            reload(j)
        A("s_nop 2")
        for mode in ("quad_perm:[1,0,3,2]", "quad_perm:[2,3,0,1]", "row_half_mirror", "row_mirror"):
            for e in range(NH):
                for j in range(J):
                    A(f"v_add_f32_dpp v{S(e,j)}, v{S(e,j)}, v{S(e,j)} {mode} {DPP}")
        for e in range(NH): A(f"v_max3_f32 v{X+e}, v{S(e,0)}, v{S(e,1)}, v{vM+e}")
        for e in range(NH): A(f"v_max3_f32 v{vM+e}, v{S(e,2)}, v{S(e,3)}, v{X+e}")
        for e in range(NH): A(f"v_mul_f32 v{X+e}, {sC}, v{vM+e}")
        for e in range(NH): A(f"v_sub_f32 v{X+2+e}, v{vMC+e}, v{X+e}")
        for e in range(NH): A(f"v_exp_f32 v{X+2+e}, v{X+2+e}")
        for e in range(NH):
            for j in range(J): A(f"v_fma_f32 v{S(e,j)}, v{S(e,j)}, {sC}, -v{X+e}")
        for e in range(NH):
            for j in range(J): A(f"v_exp_f32 v{S(e,j)}, v{S(e,j)}")
        for e in range(NH):
            A(f"v_mov_b32 v{vMC+e}, v{X+e}")
            A(f"v_mul_f32 v{vLs+e}, v{vLs+e}, v{X+2+e}")
            for k in range(8): A(f"v_mul_f32 v{vACC+8*e+k}, v{vACC+8*e+k}, v{X+2+e}")
        for e in range(NH):
            for j in range(J): A(f"v_cvt_pk_bf16_f32 v{PL(e,j)}, v{S(e,j)}, 0")
        for e in range(NH):
            for j in range(J): A(f"v_lshlrev_b32 v{S(e,j)}, 16, v{PL(e,j)}")
        for e in range(NH):
            A(f"v_add_f32 v{X}, v{S(e,0)}, v{S(e,1)}"); A(f"v_add_f32 v{X+1}, v{S(e,2)}, v{S(e,3)}")
            A(f"v_add_f32 v{vLs+e}, v{vLs+e}, v{X}"); A(f"v_add_f32 v{vLs+e}, v{vLs+e}, v{X+1}")
        for j in range(J):
            waits(J + j)
            k = ring + 4 * (J + j)
            for d in range(4):
                for e in range(NH):
                    A(f"v_dot2c_f32_bf16 v{vACC+8*e+2*d}, v{k+d}, v{PL(e,j)}")
                    A(f"v_dot2c_f32_bf16 v{vACC+8*e+2*d+1}, v{k+d}, v{S(e,j)}")
            reload(J + j)

    A("L_peel:")
    if pm in (1, 2): A("s_setprio 1")
    if pm == 2:
        A(f"s_cmp_lt_u32 {sWAVE}, 4"); A("s_cbranch_scc1 L_pm2"); A("s_setprio 2"); A("L_pm2:")
    if pm == 3: A(f"s_lshr_b32 {sTH}, {sWAVE}, 2")
    for k in range(NPF):
        compute(False, vX + 32 * k, lambda s_: None, lambda s_: A(f"s_waitcnt vmcnt({8*(NPF-k)+7-s_})"))
        A("s_nop 2")
    if trace:
        A("s_mov_b32 m0, 0"); A(f"v_mov_b32 v{vTRC}, 0")

    W7 = lambda s_: A(f"s_waitcnt vmcnt({2*J-1})") if s_ else None
    def body(lbl, isA):
        A(f"{lbl}:")
        if pm == 3:
            A(f"s_xor_b32 {sTH}, {sTH}, 1"); A(f"s_cmp_eq_u32 {sTH}, 0"); A(f"s_cbranch_scc1 {lbl}_pr1")
            A("s_setprio 2"); A(f"s_branch {lbl}_pr2"); A(f"{lbl}_pr1:"); A("s_setprio 1"); A(f"{lbl}_pr2:")
        A(f"s_waitcnt vmcnt({2*J-1})")
        if trace:
            A("s_memrealtime s[100:101]"); A("s_waitcnt lgkmcnt(0)")
            A(f"s_lshl_b32 s100, s100, 1"); A(f"s_or_b32 s100, s100, {1 if isA else 0}")
            A(f"v_writelane_b32 v{vTRC}, s100, m0"); A("s_add_u32 m0, m0, 1")
        if not isA:
            A(f"s_cmp_eq_u32 {sPK}, 0"); A(f"s_cbranch_scc0 {lbl}_r1")
            boff(sOFF, sPT); A(f"s_mov_b32 {sNK}, 0"); A(f"s_branch {lbl}_r3")
            A(f"{lbl}_r1:")
        A(f"v_readfirstlane_b32 {t0}, v{vAT}")
        A("s_nop 3")
        A(f"s_cmp_lt_u32 {t0}, {NA}"); A(f"s_cbranch_scc0 {lbl}_drain")
        A(f"s_lshl_b32 {t0}, {t0}, 12"); A(f"s_add_u32 {sOFF}, {t0}, {sAB}"); A(f"s_mov_b32 {sNK}, 1")
        if not isA:
            srd(PK, 6, 67108864); srd(PV, 8, 67108864)
        A(f"{lbl}_r3:")
        A("s_mov_b64 exec, 1")
        if not isA:
            A(f"s_cmp_eq_u32 {sBD}, 1"); A(f"s_cbranch_scc1 {lbl}_g1")
            A(f"ds_add_rtn_u32 v{vTK}, v{vZ}, v{vONE} offset:{L_TK}")
            A("s_waitcnt lgkmcnt(0)")
            A(f"v_readfirstlane_b32 {sPT}, v{vTK}")
            A("s_nop 3")
            A(f"s_cmp_eq_u32 {sPT}, {TH0}"); A(f"s_cbranch_scc0 {lbl}_noev")
            event()
            A(f"{lbl}_noev:")
            A(f"s_cmp_lt_u32 {sPT}, {NB}"); A(f"s_cbranch_scc1 {lbl}_g2")
            A(f"s_mov_b32 {sBD}, 1")
            getqa()
            A(f"{lbl}_g1:")
        A(f"v_mov_b32 v{vAT}, 1")
        A(f"buffer_atomic_add v{vAT}, v{vTC}, s[{WS}:{WS+3}], 0 offen sc0")
        A(f"s_mov_b32 {sPK}, 1")
        A(f"{lbl}_g2:")
        A("s_mov_b64 exec, -1")
        compute(isA, vRING, ld, W7)
        if not isA:
            A(f"s_cmp_eq_u32 {sNK}, 0"); A("s_cbranch_scc1 L_B")
            A(f"s_branch {lbl}_out")
        else:
            A("s_branch L_A")
        A(f"{lbl}_drain:")
        A(f"s_mov_b32 {sNK}, 2")
        compute(isA, vRING, wold, W7)
        A(f"{lbl}_out:")

    def finish(lbl, heads, cnt_off, isA):
        X = vT
        E_ = [e for (e, hs) in heads]
        a_ = lambda e: X + 2 * e
        b_ = lambda e: X + 2 * e + 1
        c_ = lambda e: X + 4 + e
        for e in E_: A(f"v_mov_b32 v{a_(e)}, v{vMC+e}"); A(f"v_mov_b32 v{b_(e)}, v{vMC+e}")
        A(f"v_and_b32 v{X+8}, 15, v{vLANE}"); A(f"v_lshlrev_b32 v{X+8}, 5, v{X+8}")
        for e in E_: A(f"v_permlane32_swap_b32 v{a_(e)}, v{b_(e)}")
        for e in E_: A(f"v_max_f32 v{a_(e)}, v{a_(e)}, v{b_(e)}"); A(f"v_mov_b32 v{b_(e)}, v{a_(e)}")
        A(f"v_lshrrev_b32 v{X+9}, 4, v{vLANE}"); A(f"v_lshl_add_u32 v{X+8}, v{X+9}, 3, v{X+8}")
        for e in E_: A(f"v_permlane16_swap_b32 v{a_(e)}, v{b_(e)}")
        for e in E_: A(f"v_max_f32 v{a_(e)}, v{a_(e)}, v{b_(e)}")
        for e in E_: A(f"v_sub_f32 v{b_(e)}, v{vMC+e}, v{a_(e)}")
        for e in E_: A(f"v_exp_f32 v{b_(e)}, v{b_(e)}")
        A(f"s_lshl_b32 {t0}, {sWAVE}, 9"); A(f"v_add_u32 v{X+8}, {t0}, v{X+8}")
        for e in E_:
            for k in range(8): A(f"v_mul_f32 v{vACC+8*e+k}, v{vACC+8*e+k}, v{b_(e)}")
            A(f"v_mul_f32 v{b_(e)}, v{vLs+e}, v{b_(e)}")
            A(f"v_mov_b32 v{c_(e)}, v{b_(e)}")
        for e in E_:
            for k in range(4): A(f"v_permlane32_swap_b32 v{vACC+8*e+k}, v{vACC+8*e+k+4}")
            A(f"v_permlane32_swap_b32 v{b_(e)}, v{c_(e)}")
        for e in E_:
            A(f"v_add_f32 v{b_(e)}, v{b_(e)}, v{c_(e)}"); A(f"v_mov_b32 v{c_(e)}, v{b_(e)}")
            for k in range(4): A(f"v_add_f32 v{vACC+8*e+k}, v{vACC+8*e+k}, v{vACC+8*e+k+4}")
        A(f"s_lshl_b32 {t0}, {sWAVE}, 3"); A(f"v_mov_b32 v{X+9}, {t0}")
        for e in E_:
            A(f"v_permlane16_swap_b32 v{b_(e)}, v{c_(e)}")
            A(f"v_permlane16_swap_b32 v{vACC+8*e}, v{vACC+8*e+2}")
            A(f"v_permlane16_swap_b32 v{vACC+8*e+1}, v{vACC+8*e+3}")
        for e in E_:
            A(f"v_add_f32 v{vACC+8*e}, v{vACC+8*e}, v{vACC+8*e+2}")
            A(f"v_add_f32 v{vACC+8*e+1}, v{vACC+8*e+1}, v{vACC+8*e+3}")
            A(f"v_add_f32 v{b_(e)}, v{b_(e)}, v{c_(e)}")
        for (e, hs) in heads:
            A(f"ds_write_b64 v{X+8}, {R(vACC+8*e,2)} offset:{L_ST+hs*4096}")
        if isA:
            A(f"v_lshrrev_b32 v{X+17}, 5, v{vLANE}"); A(f"v_and_b32 v{X+16}, 0x1f0, v{vL16}")
            A(f"v_lshl_add_u32 v{X+16}, v{X+17}, 12, v{X+16}"); A(f"v_lshlrev_b32 v{X+17}, 6, v{X+17}")
        else:
            A(f"v_lshlrev_b32 v{X+16}, 3, v{vLANE}")
        A("s_mov_b64 exec, 1")
        for (e, hs) in heads:
            A(f"ds_write_b64 v{X+9}, {R(X+2*e,2)} offset:{L_ML+hs*64}")
        A(f"ds_add_rtn_u32 v{vTK}, v{vZ}, v{vONE} offset:{cnt_off}")
        A("s_mov_b64 exec, -1")
        hs0 = heads[0][1]
        D = vRING if isA else vACC
        ND = 4 if isA else 2
        for k in range(4): A(f"ds_read_b128 {R(X+4*k)}, v{X+17 if isA else vZ} offset:{L_ML+hs0*64+16*k}")
        for w in range(8):
            if w == 4: A("s_waitcnt lgkmcnt(8)")
            A(f"ds_read_b{32*ND} {R(D+ND*w,ND)}, v{X+16} offset:{L_ST+hs0*4096+w*512}")
        if isA:
            A(f"s_lshl_b32 {t2}, {sJ}, 4"); A(f"s_add_u32 {t2}, {t2}, {sX}")
            A(f"s_lshl_b32 {t0}, {t2}, 8"); A(f"s_add_u32 {t0}, {t0}, {OA:#x}")
            A(f"s_lshl_b32 {t1}, {t2}, 3"); A(f"s_add_u32 {t1}, {t1}, {MLA:#x}")
            A(f"v_lshrrev_b32 v{X+16}, 1, v{X+16}")
        else:
            A(f"s_lshl_b32 {t0}, {sU}, 8"); A(f"s_add_u32 {t0}, {t0}, {OB:#x}")
            A(f"s_lshl_b32 {t1}, {sU}, 3"); A(f"s_add_u32 {t1}, {t1}, {MLB:#x}")
            A(f"v_lshlrev_b32 v{X+16}, 2, v{vLANE}")
        A(f"v_readfirstlane_b32 {t2}, v{vTK}")
        A("s_waitcnt lgkmcnt(8)")
        A("s_nop 1")
        A(f"s_cmp_eq_u32 {t2}, {W-1}"); A(f"s_cbranch_scc0 {lbl}_skip")
        Mx, Lx = X + 18, X + 19
        A(f"v_max3_f32 v{Mx}, v{X}, v{X+2}, v{X+4}"); A(f"v_max3_f32 v{Lx}, v{X+6}, v{X+8}, v{X+10}")
        A(f"v_max3_f32 v{Mx}, v{Mx}, v{X+12}, v{X+14}"); A(f"v_max_f32 v{Mx}, v{Mx}, v{Lx}")
        for w in range(8): A(f"v_sub_f32 v{X+2*w}, v{X+2*w}, v{Mx}")
        for w in range(8): A(f"v_exp_f32 v{X+2*w}, v{X+2*w}")
        A("s_waitcnt lgkmcnt(0)")
        for k in range(ND): A(f"v_mul_f32 v{D+k}, v{X}, v{D+k}")
        A(f"v_mul_f32 v{Lx}, v{X}, v{X+1}")
        for w in range(1, 8):
            for k in range(ND): A(f"v_fmac_f32 v{D+k}, v{X+2*w}, v{D+ND*w+k}")
            A(f"v_fmac_f32 v{Lx}, v{X+2*w}, v{X+2*w+1}")
        P = D + 4
        A(f"v_cvt_pk_bf16_f32 v{P}, v{D}, v{D+1}")
        if isA: A(f"v_cvt_pk_bf16_f32 v{P+1}, v{D+2}, v{D+3}")
        A(f"v_min_u32 v{P}, -2, v{P}")
        if isA: A(f"v_min_u32 v{P+1}, -2, v{P+1}")
        A(f"v_min_u32 v{Mx}, -2, v{Mx}"); A(f"v_min_u32 v{Lx}, -2, v{Lx}")
        if isA:
            A(f"v_mov_b32_dpp v{P+2}, v{P} quad_perm:[1,1,3,3] {DPP}")
            A(f"v_mov_b32_dpp v{P+3}, v{P+1} quad_perm:[1,1,3,3] {DPP}")
            A("s_mov_b32 exec_lo, 0x55555555"); A("s_mov_b32 exec_hi, 0x55555555")
            A(f"buffer_store_dwordx4 {R(P)}, v{X+16}, s[{WS}:{WS+3}], {t0} offen sc1")
            A("s_mov_b32 exec_lo, 1"); A("s_mov_b32 exec_hi, 1")
            A(f"buffer_store_dwordx2 {R(Mx,2)}, v{X+17}, s[{WS}:{WS+3}], {t1} offen sc1")
        else:
            A(f"v_mov_b32_dpp v{P+1}, v{P} quad_perm:[1,1,1,1] {DPP}")
            A(f"v_mov_b32_dpp v{P+2}, v{P} quad_perm:[2,2,2,2] {DPP}")
            A(f"v_mov_b32_dpp v{P+3}, v{P} quad_perm:[3,3,3,3] {DPP}")
            A("s_mov_b32 exec_lo, 0x11111111"); A("s_mov_b32 exec_hi, 0x11111111")
            A(f"buffer_store_dwordx4 {R(P)}, v{X+16}, s[{WS}:{WS+3}], {t0} offen sc1")
            A("s_mov_b64 exec, 1")
            A(f"buffer_store_dwordx2 {R(Mx,2)}, v{vZ}, s[{WS}:{WS+3}], {t1} offen sc1")
        A("s_mov_b64 exec, -1")
        A("s_nop 1")
        A(f"{lbl}_skip:")
        A("s_waitcnt lgkmcnt(0)")

    def slotB(e):
        A(f"s_lshl_b32 {t0}, {sU}, 8"); A(f"s_add_u32 {t0}, {t0}, {OB:#x}")
        A(f"s_lshl_b32 {t1}, {sU}, 3"); A(f"s_add_u32 {t1}, {t1}, {MLB:#x}")
    def slotA(e):
        A(f"s_lshl_b32 {t2}, {sJ}, 4"); A(f"s_add_u32 {t2}, {t2}, {sX}"); A(f"s_add_u32 {t2}, {t2}, {8*e}")
        A(f"s_lshl_b32 {t0}, {t2}, 8"); A(f"s_add_u32 {t0}, {t0}, {OA:#x}")
        A(f"s_lshl_b32 {t1}, {t2}, 3"); A(f"s_add_u32 {t1}, {t1}, {MLA:#x}")

    body("L_B", False)
    stamp(4)
    finish("L_fB", [(0, 0)], L_DB, False)
    init_state()
    A(f"s_cmp_eq_u32 {sNK}, 1"); A("s_cbranch_scc0 L_Adone")
    body("L_A", True)
    A("L_Adone:")
    stamp(5)
    finish("L_fA", [(0, 1), (1, 2)], L_DA, True)
    if pm: A("s_setprio 0")
    A(f"s_cmp_eq_u32 {sCONS}, 0"); A("s_cbranch_scc1 L_fin")
    X = vT
    A(f"s_lshl_b32 {t2}, {sKQ}, 2"); A(f"s_lshr_b32 {t0}, {sWAVE}, 1"); A(f"s_add_u32 {t2}, {t2}, {t0}")
    A(f"s_and_b32 {t3}, {sWAVE}, 1"); A(f"s_lshl_b32 {t3}, {t3}, 7")
    A(f"v_lshrrev_b32 v{X+2}, 5, v{vLANE}")
    A(f"v_and_b32 v{X+3}, 31, v{vLANE}"); A(f"v_lshlrev_b32 v{X+3}, 2, v{X+3}")
    WX = {}
    def prepack():
        free = vWO + 32
        for p in range(4):
            for d in range(4):
                a = vWO + 8 * p + d; b = vWO + 8 * p + 4 + d
                A(f"v_perm_b32 v{free}, v{b}, v{a}, {sSEL0}")
                A(f"v_perm_b32 v{b}, v{b}, v{a}, {sSEL1}")
                WX[(p, 2 * d)] = free; WX[(p, 2 * d + 1)] = b
                free = a
    A(f"s_cmp_eq_u32 {sCONS}, 1"); A("s_cbranch_scc1 L_gA")
    def gather(lbl, S, OBASE, MLBASE):
        SETS = [(132, 148), (160, 176)]
        NL = S + S // 2
        lg = {4: 10, 8: 11}[S]
        A(f"{lbl}:")
        A(f"v_lshl_add_u32 v{X}, v{X+2}, {lg+5}, v{X+3}")
        A(f"v_lshlrev_b32 v{X+1}, {lg}, v{X+2}")
        A(f"s_lshl_b32 {t0}, {t2}, {lg}"); A(f"s_add_u32 {t0}, {t0}, {t3}"); A(f"s_add_u32 {t0}, {t0}, {OBASE:#x}")
        A(f"s_lshl_b32 {t1}, {t2}, {lg-5}"); A(f"s_add_u32 {t1}, {t1}, {MLBASE:#x}")
        def issue(z):
            ML, G = SETS[z]
            for k in range(S // 2): A(f"buffer_load_dwordx4 {R(ML+4*k)}, v{X+1}, s[{WS}:{WS+3}], {t1} offen offset:{16*k} sc1")
            for s_ in range(S): A(f"buffer_load_dword v{G+s_}, v{X}, s[{WS}:{WS+3}], {t0} offen offset:{256*s_} sc1")
        def check(z):
            ML, G = SETS[z]
            regs = [ML + k for k in range(2 * S)] + [G + k for k in range(S)]
            A(f"v_max3_u32 v{X+4}, v{regs[0]}, v{regs[1]}, v{regs[2]}"); A(f"v_max3_u32 v{X+5}, v{regs[3]}, v{regs[4]}, v{regs[5]}")
            rest = regs[6:]; y = 0
            while rest:
                A(f"v_max3_u32 v{X+4+y}, v{X+4+y}, v{rest[0]}, v{rest[1]}"); rest = rest[2:]; y ^= 1
            A(f"v_max_u32 v{X+4}, v{X+4}, v{X+5}")
            A(f"v_cmp_eq_u32 vcc, -1, v{X+4}")
            A(f"s_cbranch_vccz {lbl}_ok{z}")
            A(f"s_add_u32 {sSP}, {sSP}, 1"); A(f"s_cmp_lt_u32 {sSP}, {spin}"); A(f"s_cbranch_scc0 {lbl}_ok{z}")
        issue(0)
        A(f"v_lshrrev_b32 v{X+8}, {lg-8}, v{vLANE}"); A(f"v_lshlrev_b32 v{X+8}, {lg}, v{X+8}")
        A(f"v_and_b32 v{X+9}, {S-1}, v{vLANE}"); A(f"v_lshl_add_u32 v{X+8}, v{X+9}, 3, v{X+8}")
        A(f"s_mov_b32 {sSP}, 0")
        A(f"s_waitcnt vmcnt({NL})")
        prepack()
        A("s_waitcnt vmcnt(0)")
        check(0)
        ML0 = SETS[0][0]
        A("s_mov_b32 s30, 0")
        for s_ in range(S):
            A(f"v_cmp_eq_u32 vcc, -1, v{ML0+2*s_}"); A("s_nop 1"); A("s_bcnt1_i32_b64 s31, vcc"); A("s_add_u32 s30, s30, s31")
        A(f"s_cmp_le_u32 s30, {32*KM}"); A(f"s_cbranch_scc1 {lbl}_p1ok")
        A(f"s_mov_b64 exec, {(1 << (2*S)) - 1:#x}")
        A(f"{lbl}_p1:")
        A(f"s_sleep {slp1}")
        A(f"buffer_load_dword v{X+9}, v{X+8}, s[{WS}:{WS+3}], {t1} offen sc1")
        A("s_waitcnt vmcnt(0)")
        A(f"v_cmp_eq_u32 vcc, -1, v{X+9}")
        A(f"s_add_u32 {sSP}, {sSP}, 1"); A("s_nop 0")
        A(f"s_bcnt1_i32_b64 s30, vcc")
        A(f"s_cmp_lt_u32 {sSP}, {spin}"); A(f"s_cbranch_scc0 {lbl}_p1x")
        A(f"s_cmp_le_u32 s30, {KM}"); A(f"s_cbranch_scc0 {lbl}_p1")
        A(f"{lbl}_p1x:")
        A("s_mov_b64 exec, -1")
        A(f"{lbl}_p1ok:")
        issue(0)
        if pipe:
            A(f"s_sleep {dslp}")
            A(f"{lbl}_poll:")
            issue(1)
            A(f"s_waitcnt vmcnt({NL})")
            check(0)
            issue(0)
            A(f"s_waitcnt vmcnt({NL})")
            check(1)
            A(f"s_branch {lbl}_poll")
        else:
            A(f"{lbl}_poll:")
            A("s_waitcnt vmcnt(0)")
            check(0)
            issue(0)
            A(f"s_branch {lbl}_poll")
        for z in ((0, 1) if pipe else (0,)):
            ML, G = SETS[z]
            T_ = vRING
            A(f"{lbl}_ok{z}:")
            stamp(6)
            Mx = X + 4
            A(f"v_max3_f32 v{Mx}, v{ML}, v{ML+2}, v{ML+4}"); A(f"v_max_f32 v{Mx}, v{Mx}, v{ML+6}")
            if S == 8:
                A(f"v_max3_f32 v{Mx}, v{Mx}, v{ML+8}, v{ML+10}"); A(f"v_max3_f32 v{Mx}, v{Mx}, v{ML+12}, v{ML+14}")
            for s_ in range(S): A(f"v_sub_f32 v{ML+2*s_}, v{ML+2*s_}, v{Mx}")
            for s_ in range(S): A(f"v_exp_f32 v{ML+2*s_}, v{ML+2*s_}")
            for s_ in range(S): A(f"v_lshlrev_b32 v{T_+s_}, 16, v{G+s_}")
            for s_ in range(S): A(f"v_and_b32 v{G+s_}, 0xffff0000, v{G+s_}")
            A(f"v_mul_f32 v{X+5}, v{ML}, v{ML+1}"); A(f"v_mul_f32 v{X+6}, v{ML}, v{T_}"); A(f"v_mul_f32 v{X+7}, v{ML}, v{G}")
            for s_ in range(1, S):
                A(f"v_fmac_f32 v{X+5}, v{ML+2*s_}, v{ML+2*s_+1}")
                A(f"v_fmac_f32 v{X+6}, v{ML+2*s_}, v{T_+s_}"); A(f"v_fmac_f32 v{X+7}, v{ML+2*s_}, v{G+s_}")
            A("s_branch L_dot")
    gather("L_gB", 4, OB, MLB)
    gather("L_gA", 8, OA, MLA)
    A("L_dot:")
    Y = vACC
    A(f"v_rcp_f32 v{X+5}, v{X+5}")
    A(f"s_lshl_b32 {t0}, {sWAVE}, 8")
    A(f"v_lshlrev_b32 v{X}, 2, v{vLANE}"); A(f"v_add_u32 v{X}, {t0}, v{X}")
    A(f"v_mul_f32 v{X+6}, v{X+6}, v{X+5}"); A(f"v_mul_f32 v{X+7}, v{X+7}, v{X+5}")
    A(f"v_lshrrev_b32 v{X+1}, 3, v{vLANE}"); A(f"v_lshlrev_b32 v{X+1}, 4, v{X+1}"); A(f"v_add_u32 v{X+1}, {t0}, v{X+1}")
    A(f"v_cvt_pk_bf16_f32 v{X+6}, v{X+6}, v{X+7}")
    A(f"ds_write_b32 v{X}, v{X+6} offset:{L_OX}")
    for k in range(16): A(f"v_mov_b32 v{Y+k}, 0")
    A("s_waitcnt lgkmcnt(0)")
    A(f"ds_read_b128 {R(X+8)}, v{X+1} offset:{L_OX}")
    A(f"ds_read_b128 {R(X+12)}, v{X+1} offset:{L_OX+128}")
    A("s_waitcnt lgkmcnt(1)")
    for b in range(2):
        if b: A("s_waitcnt lgkmcnt(0)")
        for p in range(4):
            for k in range(8):
                A(f"v_dot2c_f32_bf16 v{Y+8*b+k}, v{X+8+4*b+p}, v{WX[(p,k)]}")
    A("s_nop 2")
    for k in range(16): A(f"v_add_f32_dpp v{Y+k}, v{Y+k}, v{Y+k} row_ror:8 {DPP}")
    for k in range(8): A(f"v_permlane32_swap_b32 v{Y+k}, v{Y+k+8}")
    for k in range(8): A(f"v_add_f32 v{Y+k}, v{Y+k}, v{Y+k+8}")
    for k in range(4): A(f"v_permlane16_swap_b32 v{Y+k}, v{Y+k+4}")
    for k in range(4): A(f"v_add_f32 v{Y+k}, v{Y+k}, v{Y+k+4}")
    A(f"v_lshrrev_b32 v{X}, 5, v{vLANE}"); A(f"v_lshlrev_b32 v{X}, 8, v{X}")
    A(f"v_and_b32 v{X+1}, 7, v{vLANE}"); A(f"v_lshl_add_u32 v{X}, v{X+1}, 5, v{X}")
    A(f"v_and_b32 v{X+1}, 16, v{vLANE}"); A(f"v_add_u32 v{X}, v{X}, v{X+1}")
    A(f"s_lshl_b32 {t0}, {sWAVE}, 9"); A(f"v_add_u32 v{X}, {t0}, v{X}")
    A("s_mov_b32 exec_lo, 0x00ff00ff"); A("s_mov_b32 exec_hi, 0x00ff00ff")
    A(f"ds_write_b128 v{X}, {R(Y)} offset:{L_RL}")
    A("s_mov_b64 exec, -1")
    A("s_waitcnt lgkmcnt(0)")
    A("s_barrier")
    A(f"s_cmp_eq_u32 {sWAVE}, 0"); A("s_cbranch_scc0 L_fin")
    A(f"v_lshlrev_b32 v{X}, 3, v{vLANE}")
    for w in range(8): A(f"ds_read_b64 {R(Y+2*w,2)}, v{X} offset:{L_RL+512*w}")
    A(f"s_lshl_b32 {t1}, {sLC}, 12"); A(f"s_add_u32 {t1}, {t1}, {YP:#x}")
    A(f"s_lshl_b32 {t0}, {sKQ}, 9"); A(f"s_add_u32 {t0}, {t0}, {t1}")
    A("s_waitcnt lgkmcnt(0)")
    for k in range(8): A(f"v_add_f32 v{Y+k}, v{Y+k}, v{Y+k+8}")
    for k in range(4): A(f"v_add_f32 v{Y+k}, v{Y+k}, v{Y+k+4}")
    for k in range(2): A(f"v_add_f32 v{Y+k}, v{Y+k}, v{Y+k+2}")
    A(f"v_min_u32 v{Y}, -2, v{Y}"); A(f"v_min_u32 v{Y+1}, -2, v{Y+1}"); A("s_nop 1")
    A(f"v_mov_b32_dpp v{Y+2}, v{Y} quad_perm:[1,1,3,3] {DPP}"); A(f"v_mov_b32_dpp v{Y+3}, v{Y+1} quad_perm:[1,1,3,3] {DPP}")
    A("s_mov_b32 exec_lo, 0x55555555"); A("s_mov_b32 exec_hi, 0x55555555")
    A(f"buffer_store_dwordx4 {R(Y)}, v{X}, s[{WS}:{WS+3}], {t0} offen sc1")
    A("s_mov_b64 exec, -1")
    stamp(7)
    A(f"s_cmp_eq_u32 {sKQ}, 0"); A("s_cbranch_scc0 L_fin")
    G = vRING
    srd(TS, 24, 2304 * 2)
    A(f"s_lshl_b32 {t0}, {sLC}, 7")
    A(f"v_lshrrev_b32 v{X+1}, 5, v{vLANE}"); A(f"v_mul_u32_u24 v{X+1}, 2304, v{X+1}")
    A(f"v_and_b32 v{X+2}, 31, v{vLANE}"); A(f"v_lshl_add_u32 v{X+1}, v{X+2}, 2, v{X+1}")
    A(f"s_mov_b32 {sSP}, 0")
    def yissue(z):
        for k in range(8): A(f"buffer_load_dwordx2 {R(G+16*z+2*k,2)}, v{X}, s[{WS}:{WS+3}], {t1} offen offset:{512*k} sc1")
    def ycheck(z):
        g = G + 16 * z
        A(f"v_max3_u32 v{X+4}, v{g}, v{g+1}, v{g+2}"); A(f"v_max3_u32 v{X+5}, v{g+3}, v{g+4}, v{g+5}")
        for k in range(5): A(f"v_max3_u32 v{X+4+(k&1)}, v{X+4+(k&1)}, v{g+6+2*k}, v{g+7+2*k}")
        A(f"v_max_u32 v{X+4}, v{X+4}, v{X+5}")
        A(f"v_cmp_eq_u32 vcc, -1, v{X+4}")
        A(f"s_cbranch_vccz L_yok{z}")
        A(f"s_add_u32 {sSP}, {sSP}, 1"); A(f"s_cmp_lt_u32 {sSP}, {spin}"); A(f"s_cbranch_scc0 L_yok{z}")
    yissue(0)
    if pipe:
        A(f"s_sleep {dslp}")
        A("L_ypoll:")
        yissue(1); A("s_waitcnt vmcnt(8)"); ycheck(0)
        yissue(0); A("s_waitcnt vmcnt(8)"); ycheck(1)
        A("s_branch L_ypoll")
    else:
        A("L_ypoll:")
        A("s_waitcnt vmcnt(0)"); ycheck(0); yissue(0)
        A("s_branch L_ypoll")
    for z in ((1, 0) if pipe else (0,)):
        g = G + 16 * z
        A(f"L_yok{z}:")
        for k in range(8): A(f"v_add_f32 v{g+k}, v{g+k}, v{g+k+8}")
        for k in range(4): A(f"v_add_f32 v{g+k}, v{g+k}, v{g+k+4}")
        for k in range(2): A(f"v_add_f32 v{g+k}, v{g+k}, v{g+k+2}")
        A(f"v_cvt_pk_bf16_f32 v{X+4}, v{g}, v{g+1}")
        A(f"buffer_store_dword v{X+4}, v{X+1}, s[{TS}:{TS+3}], {t0} offen")
        if z: A("s_branch L_fin")
    A("L_fin:")
    if not stamps: A("s_waitcnt vmcnt(0)")
    if stamps:
        stamp(8)
        A("s_getreg_b32 s30, hwreg(HW_REG_XCC_ID)")
        A("s_waitcnt vmcnt(0) lgkmcnt(0)")
        for k in range(NST): A(f"v_mov_b32 v{vRING+k}, s{84+2*k}")
        for k in range(NST, 15): A(f"v_mov_b32 v{vRING+k}, 0")
        A(f"v_mov_b32 v{vRING+15}, s30")
        A(f"s_lshl_b32 {t0}, s2, 3"); A(f"s_add_u32 {t0}, {t0}, {sWAVE}"); A(f"s_lshl_b32 {t0}, {t0}, 6"); A(f"s_add_u32 {t0}, {t0}, {STAMP:#x}")
        A("s_mov_b64 exec, 1")
        for k in range(4): A(f"buffer_store_dwordx4 {R(vRING+4*k)}, v{vZ}, s[{WS}:{WS+3}], {t0} offen offset:{16*k}")
    if trace:
        A("s_mov_b64 exec, -1")
        A(f"s_lshl_b32 {t0}, s2, 3"); A(f"s_add_u32 {t0}, {t0}, {sWAVE}"); A(f"s_lshl_b32 {t0}, {t0}, 8"); A(f"s_add_u32 {t0}, {t0}, 0x280000")
        A(f"v_lshlrev_b32 v{vT}, 2, v{vLANE}")
        A(f"buffer_store_dword v{vTRC}, v{vT}, s[{WS}:{WS+3}], {t0} offen")
    if dbgt:
        A(f"s_cmp_eq_u32 {sWAVE}, 0"); A("s_cbranch_scc0 L_end")
        srd(TS, 26, 256)
        A("s_mov_b64 exec, 1")
        A(f"s_not_b32 s84, s84")
        for k in (0, 3, 4, 5, 8):
            A(f"v_mov_b32 v{vRING+k}, s{84+2*k}")
            A(f"buffer_atomic_umax v{vRING+k}, v{vZ}, s[{TS}:{TS+3}], 0 offen offset:{4+4*k}")
    A("L_end:")
    A("s_endpgm")
    o.append('.section .rodata,"a"'); o.append(".p2align 6"); o.append(f".amdhsa_kernel {KN}")
    o.append(f"  .amdhsa_next_free_vgpr {NV}"); o.append("  .amdhsa_next_free_sgpr 102"); o.append(f"  .amdhsa_accum_offset {(NV+3)//4*4}")
    o.append("  .amdhsa_group_segment_fixed_size 0"); o.append("  .amdhsa_kernarg_size 104"); o.append("  .amdhsa_user_sgpr_count 2")
    o.append("  .amdhsa_user_sgpr_kernarg_segment_ptr 1"); o.append("  .amdhsa_system_sgpr_workgroup_id_x 1"); o.append(".end_amdhsa_kernel")
    open(fn, "w").write("\n".join(o) + "\n")

if __name__ == "__main__":
    E = "exp/"
    T = dict(stamps=True)
    gen(E + "k8.s")
    gen(E + "k8_a.s", **T)
    gen(E + "k8_b.s", NPF=2, **T)
    gen(E + "k8_c.s", abar=True, **T)
    gen(E + "k8_d.s", qdel=16, **T)
    gen(E + "k8_e.s", NPF=2, first=2, **T)
    gen(E + "k8_f.s", NPF=1, **T)
    import gen7
    gen7.gen(E + "k7_st.s", mapping=1, sord=(13,16,17,18,12,14,15), warm=0, first=4, pipe=False, stamps=True)
```
